```python
import torch

def _softmax(x, axis=-1):
    return torch.softmax(x, dim=axis)
def _gelu(x):
    return torch.nn.functional.gelu(x, approximate="tanh")
def _silu(x):
    return torch.nn.functional.silu(x)
def _sigmoid(x):
    return torch.sigmoid(x)
def _layernorm(x, axis=-1, eps=1e-5):
    m = x.mean(dim=axis, keepdim=True)
    v = x.var(dim=axis, keepdim=True, unbiased=False)
    return (x - m) / torch.sqrt(v + eps)
def _scatter_add(tgt, idx, src, axis=0):
    return tgt.clone().index_add_(axis, idx, src)
def _segment_sum(src, seg, n):
    out = torch.zeros((n,) + src.shape[1:], dtype=src.dtype)
    return out.index_add_(0, seg, src)
def _pad(x, pw):
    flat = tuple(v for pair in reversed(pw) for v in pair)
    return torch.nn.functional.pad(x, flat)

kernel_name = 'parallel_sum__sliding_block__glu_gated_glu__prompt'

def setup_inputs():

    _w = (lambda a: (lambda t: t.to(torch.bfloat16) if t.is_floating_point() else t)(torch.as_tensor(a)))
    def _A_setup():
        B, S, D = 1, 2048, 512
        return {
            "x": _w((lambda *s: torch.randn(*s, dtype=torch.bfloat16) * 0.05)(B, S, D)),
            "wqkv": _w((lambda *s: torch.randn(*s, dtype=torch.bfloat16) * 0.05)(D, 3 * D)),
            "wo": _w((lambda *s: torch.randn(*s, dtype=torch.bfloat16) * 0.05)(D, D)),
        }
    _A_in = _A_setup()

    def _B_setup():
        B, S, D, F = 1, 2048, 512, 1792
        return {
            "x": _w((lambda *s: torch.randn(*s, dtype=torch.bfloat16) * 0.05)(B, S, D)),
            "w_gate": _w((lambda *s: torch.randn(*s, dtype=torch.bfloat16) * 0.05)(D, F)),
            "w_up": _w((lambda *s: torch.randn(*s, dtype=torch.bfloat16) * 0.05)(D, F)),
            "w_down": _w((lambda *s: torch.randn(*s, dtype=torch.bfloat16) * 0.05)(F, D)),
        }
    _B_in = _B_setup()

    return {
        "A_x": _A_in["x"],
        "A_wqkv": _A_in["wqkv"],
        "A_wo": _A_in["wo"],
        "B_x": _B_in["x"],
        "B_w_gate": _B_in["w_gate"],
        "B_w_up": _B_in["w_up"],
        "B_w_down": _B_in["w_down"],
    }

def reference(A_x, A_wqkv, A_wo, B_x, B_w_gate, B_w_up, B_w_down):
    def _A_ref(x, wqkv, wo):
        B, S, D = x.shape
        H = 32; Dh = D // H; W = 256
        qkv = (lambda x, *d: x.permute(*d))((x @ wqkv).reshape(B, S, 3, H, Dh), 2, 0, 3, 1, 4)
        q, k, v = qkv[0], qkv[1], qkv[2]
        scores = torch.einsum("bhqd,bhkd->bhqk", q, k) * (Dh ** -0.5)
        idx = torch.arange(S)
        mask = (idx[:, None] - idx[None, :] >= 0) & (idx[:, None] - idx[None, :] < W)
        scores = torch.where(mask[None, None], scores, -1e9)
        p = _softmax(scores, axis=-1)
        o = torch.einsum("bhqk,bhkd->bhqd", p, v)
        return (lambda x, *d: x.permute(*d))(o, 0, 2, 1, 3).reshape(B, S, D) @ wo

    def _B_ref(x, w_gate, w_up, w_down):
        g = torch.einsum("bsd,df->bsf", x, w_gate)
        u = torch.einsum("bsd,df->bsf", x, w_up)
        h = _sigmoid(g) * u
        return torch.einsum("bsf,fd->bsd", h, w_down)

    x = A_x
    xn = _layernorm(x, axis=-1)
    return x + _A_ref(xn, A_wqkv, A_wo) + _B_ref(xn, B_w_gate, B_w_up, B_w_down)
```

```python
import re

REG_RE = re.compile(r'^(v|a|s)(\d+)$|^(v|a|s)\[(\d+):(\d+)\]$')

def parse_reg(tok):
    tok = tok.strip()
    if tok.startswith('-'): tok = tok[1:]
    if tok.startswith('abs(') and tok.endswith(')'): tok = tok[4:-1]
    if tok.startswith('|') and tok.endswith('|'): tok = tok[1:-1]
    if tok == 'vcc': return [('s', 106), ('s', 107)]
    if tok == 'vcc_lo': return [('s', 106)]
    if tok == 'vcc_hi': return [('s', 107)]
    if tok == 'exec': return [('s', 126), ('s', 127)]
    if tok == 'exec_lo': return [('s', 126)]
    if tok == 'exec_hi': return [('s', 127)]
    if tok == 'm0': return [('s', 124)]
    if tok == 'scc': return []
    m = REG_RE.match(tok)
    if not m: return []
    if m.group(1):
        return [(m.group(1), int(m.group(2)))]
    return [(m.group(3), i) for i in range(int(m.group(4)), int(m.group(5)) + 1)]

TRANS = ('v_exp_f32', 'v_log_f32', 'v_rcp_f32', 'v_rsq_f32', 'v_sqrt_f32', 'v_sin_f32', 'v_cos_f32', 'v_exp_f16', 'v_rcp_iflag_f32')

class Ins:
    __slots__ = ('text', 'mn', 'ops', 'defs', 'uses', 'kind', 'mods')
    def __init__(self, text):
        self.text = text
        t = text.split(';')[0].strip()
        parts = t.split(None, 1)
        self.mn = parts[0]
        rest = parts[1] if len(parts) > 1 else ''
        ops = []; depth = 0; cur = ''
        for ch in rest:
            if ch in '[(': depth += 1
            if ch in '])': depth -= 1
            if ch == ',' and depth == 0:
                ops.append(cur.strip()); cur = ''
            else:
                cur += ch
        if cur.strip(): ops.append(cur.strip())
        mods = []
        if ops:
            last = ops[-1].split()
            ops[-1] = last[0] if last else ''
            mods = last[1:]
            if ops[-1] in ('offen', 'idxen', 'lds', 'sc0', 'sc1', 'nt', 'off') or ':' in ops[-1] and not ops[-1].startswith(('v[', 's[', 'a[')):
                if ops[-1] != 'off':
                    mods = [ops[-1]] + mods
                    ops = ops[:-1]
        self.ops = ops; self.mods = mods
        self.classify()

    def classify(self):
        mn = self.mn; ops = self.ops
        R = parse_reg
        defs = []; uses = []
        if mn.startswith('v_mfma'):
            self.kind = 'mfma'
            defs = R(ops[0]); uses = R(ops[1]) + R(ops[2]) + R(ops[3])
        elif mn.startswith('v_cmp'):
            self.kind = 'valu'
            defs = R(ops[0]); uses = sum((R(o) for o in ops[1:]), [])
            if mn.startswith('v_cmpx'): defs += R('exec')
        elif mn.startswith('v_permlane') and 'swap' in mn:
            self.kind = 'valu'
            defs = R(ops[0]) + R(ops[1]); uses = R(ops[0]) + R(ops[1])
        elif mn.startswith('v_readfirstlane') or mn.startswith('v_readlane'):
            self.kind = 'valu'
            defs = R(ops[0]); uses = sum((R(o) for o in ops[1:]), [])
        elif mn.startswith('v_'):
            self.kind = 'valu'
            defs = R(ops[0]); uses = sum((R(o) for o in ops[1:]), [])
            if mn.startswith(('v_fmac', 'v_dot2c', 'v_mac', 'v_pk_fmac')): uses += R(ops[0])
            if mn.startswith(('v_add_co', 'v_sub_co', 'v_addc_co', 'v_subb_co', 'v_subrev_co')):
                defs += R(ops[1])
            if mn.startswith('v_cndmask') and len(ops) == 3: uses += R('vcc')
            if mn.startswith('v_writelane'): uses += R(ops[0])
        elif mn.startswith('ds_read') or mn.startswith('ds_bpermute') or mn.startswith('ds_swizzle') or mn.startswith('ds_permute'):
            self.kind = 'ds'
            defs = R(ops[0]); uses = sum((R(o) for o in ops[1:]), [])
        elif mn.startswith('ds_add_rtn') or mn.startswith('ds_inc_rtn'):
            self.kind = 'ds'
            defs = R(ops[0]); uses = sum((R(o) for o in ops[1:]), [])
        elif mn.startswith('ds_'):
            self.kind = 'ds'
            uses = sum((R(o) for o in ops), [])
        elif mn.startswith('buffer_load') or mn.startswith('global_load'):
            self.kind = 'vmem'
            if 'lds' in self.mods or 'lds' in mn:
                uses = sum((R(o) for o in ops), []) + R('m0')
            else:
                defs = R(ops[0]); uses = sum((R(o) for o in ops[1:]), [])
        elif mn.startswith('buffer_store') or mn.startswith('global_store'):
            self.kind = 'vmem'
            uses = sum((R(o) for o in ops), [])
        elif mn.startswith('buffer_atomic') or mn.startswith('global_atomic'):
            self.kind = 'vmem'
            uses = sum((R(o) for o in ops), [])
            if 'sc0' in self.mods: defs = R(ops[0])
        elif mn.startswith('buffer_wbl2') or mn.startswith('buffer_inv'):
            self.kind = 'vmem'
        elif mn.startswith('s_load') or mn.startswith('s_memtime') or mn.startswith('s_memrealtime') or mn.startswith('s_buffer_load'):
            self.kind = 'smem'
            defs = R(ops[0]); uses = sum((R(o) for o in ops[1:]), [])
        elif mn in ('s_waitcnt', 's_barrier', 's_nop', 's_sleep', 's_setprio', 's_endpgm', 's_branch') or mn.startswith('s_cbranch'):
            self.kind = 'ctl'
        elif mn.startswith('s_cmp'):
            self.kind = 'salu'
            uses = sum((R(o) for o in ops), [])
        elif mn.startswith('s_'):
            self.kind = 'salu'
            defs = R(ops[0]); uses = sum((R(o) for o in ops[1:]), [])
            if 'saveexec' in mn: defs += R('exec'); uses += R('exec')
        else:
            raise ValueError('unknown instruction ' + self.text)
        self.defs = defs; self.uses = uses

class Asm:
    def __init__(self, check=True):
        self.lines = []
        self.check = check
        self.reset_state()
        self.errors = []
        self.count = 0
        self.nops_inserted = 0
    def reset_state(self):
        self.slot = 0
        self.valu_w = {}
        self.trans_w = {}
        self.mfma_w = {}
        self.mfma_c = {}
        self.salu_m0 = -100
        self.store_data = {}
        self.vm = []
        self.lg = []
        self.exec_w = -100
    def raw(self, text):
        self.lines.append(text)
    def label(self, name, reset=True):
        self.lines.append(name + ':')
    def comment(self, text):
        self.lines.append('  ; ' + text)
    def nop(self, n):
        while n > 0:
            k = min(n, 16)
            self.lines.append(f'  s_nop {k-1}')
            self.slot += k; n -= k
            self.nops_inserted += 1
    def forget_waits(self):
        self.vm = []; self.lg = []
    def __call__(self, text):
        for t in text.split('\n'):
            t = t.strip()
            if not t or t.startswith(';'):
                continue
            if t.endswith(':'):
                self.label(t[:-1]); continue
            self.emit(t)
    def emit(self, text):
        i = Ins(text)
        for m in i.mods:
            if m.startswith('offset:'):
                o = int(m.split(':')[1])
                if i.kind == 'vmem' and o > 4095: self.errors.append(f'MUBUF offset too large: {text}')
                if i.kind == 'ds' and o > 65535: self.errors.append(f'DS offset too large: {text}')
        need = 0
        def req(prod_slot, ws):
            nonlocal need
            d = self.slot - prod_slot - 1
            if d < ws: need = max(need, ws - d)
        vuses = [r for r in i.uses if r[0] in 'va']
        suses = [r for r in i.uses if r[0] == 's']
        vdefs = [r for r in i.defs if r[0] in 'va']
        if i.kind == 'mfma':
            for r in vuses:
                if r in self.valu_w: req(self.valu_w[r], 2)
            from_ops = parse_reg(i.ops[1]) + parse_reg(i.ops[2])
            for r in from_ops:
                if r in self.mfma_w: req(self.mfma_w[r][0], 12)
            cregs = parse_reg(i.ops[3])
            for r in cregs:
                if r in self.mfma_w:
                    s, d0 = self.mfma_w[r]
                    if d0 != tuple(cregs): req(s, 10)
            req(self.exec_w, 4)
        elif i.kind == 'valu':
            for r in vuses + vdefs:
                if r in self.mfma_w: req(self.mfma_w[r][0], 12)
            for r in vdefs:
                if r in self.mfma_c: req(self.mfma_c[r], 7)
                if r in self.store_data: req(self.store_data[r], 2)
            if i.mn not in TRANS:
                for r in vuses:
                    if r in self.trans_w: req(self.trans_w[r], 1)
            for r in suses:
                if r in self.valu_w:
                    req(self.valu_w[r], 2)
            if i.mn.startswith(('v_readfirstlane', 'v_readlane')):
                for r in vuses:
                    if r in self.valu_w: req(self.valu_w[r], 1)
                if i.mn.startswith('v_readlane'):
                    for r in suses:
                        if r in self.valu_w: req(self.valu_w[r], 4)
            if i.mn.startswith('v_permlane'):
                for r in vuses:
                    if r in self.valu_w: req(self.valu_w[r], 2)
            if '_dpp' in i.mn or any(m.startswith(('row_', 'quad_perm', 'wave_')) for m in i.mods):
                for r in vuses:
                    if r in self.valu_w: req(self.valu_w[r], 2)
                req(self.exec_w, 5)
        elif i.kind in ('vmem', 'ds'):
            for r in vuses + vdefs:
                if r in self.mfma_w: req(self.mfma_w[r][0], 12)
            for r in suses:
                if r in self.valu_w and i.kind == 'vmem': req(self.valu_w[r], 5)
            for r in vdefs:
                if r in self.store_data: req(self.store_data[r], 1)
            if ('s', 124) in i.uses: req(self.salu_m0, 1)
            for r in vuses:
                if r in self.trans_w: req(self.trans_w[r], 1)
        elif i.kind in ('salu',):
            for r in suses:
                if r in self.valu_w: req(self.valu_w[r], 4)
        elif i.kind == 'ctl':
            if i.mn in ('s_cbranch_vccz', 's_cbranch_vccnz', 's_cbranch_execz', 's_cbranch_execnz'):
                for r in [('s', 106), ('s', 107), ('s', 126), ('s', 127)]:
                    if r in self.valu_w: req(self.valu_w[r], 5)
        if need: self.nop(need)
        if self.check:
            touched = set(i.uses) | set(i.defs)
            if i.kind == 'vmem' and i.mn == 'buffer_load_dword' and 'sc1' not in i.mods:
                touched = set(i.uses)
            for q, nm in ((self.vm, 'vmcnt'), (self.lg, 'lgkmcnt')):
                for dst in q:
                    if dst & touched:
                        self.errors.append(f'[{nm}] use of in-flight reg {sorted(dst & touched)[:4]} at line {len(self.lines)}: {text}')
        if i.mn == 's_waitcnt':
            m = re.search(r'vmcnt\((\d+)\)', text)
            if m:
                n = int(m.group(1))
                while len(self.vm) > n: self.vm.pop(0)
            m = re.search(r'lgkmcnt\((\d+)\)', text)
            if m:
                n = int(m.group(1))
                has_smem = any(('smem',0) in d for d in self.lg)
                if has_smem and n > 0:
                    self.errors.append(f'lgkmcnt({n}) with SMEM outstanding at line {len(self.lines)}')
                while len(self.lg) > n: self.lg.pop(0)
        if i.kind == 'vmem':
            self.vm.append(set(i.defs))
            if len(self.vm) > 63: self.errors.append(f'vmcnt overflow at line {len(self.lines)}: {text}')
            if ('store_dwordx4' in i.mn or 'store_dwordx3' in i.mn):
                for r in parse_reg(i.ops[0] if i.mn.startswith('buffer') else i.ops[1]): self.store_data[r] = self.slot
        elif i.kind == 'ds':
            self.lg.append(set(i.defs))
        elif i.kind == 'smem':
            self.lg.append(set(i.defs) | {('smem', 0)})
        if i.kind == 'valu':
            for r in i.defs:
                self.valu_w[r] = self.slot
                self.mfma_w.pop(r, None)
                if i.mn in TRANS: self.trans_w[r] = self.slot
                else: self.trans_w.pop(r, None)
                if r in (('s',126),('s',127)): self.exec_w = self.slot
        elif i.kind == 'mfma':
            d = tuple(i.defs)
            for r in i.defs:
                self.mfma_w[r] = (self.slot, d); self.valu_w.pop(r, None); self.trans_w.pop(r, None)
            for r in parse_reg(i.ops[3]): self.mfma_c[r] = self.slot
        else:
            for r in i.defs:
                self.valu_w.pop(r, None); self.trans_w.pop(r, None); self.mfma_w.pop(r, None)
            if i.kind == 'salu' and ('s', 124) in i.defs: self.salu_m0 = self.slot
        self.lines.append('  ' + text)
        if i.mn == 's_nop':
            self.slot += int(i.ops[0]) + 1
        else:
            self.slot += 1
        self.count += 1
    def text(self):
        return '\n'.join(self.lines) + '\n'
```

```python
import sys, os, struct
sys.path.insert(0, os.path.dirname(os.path.abspath(__file__)))
from asmlib import Asm

KNAME = "parallel_sum__sliding_block__glu_gated_glu__prompt_kernel"
STAMPS = int(os.environ.get("STAMPS", "0"))
NOFLAG = int(os.environ.get("NOFLAG", "0"))

WS_Q, WS_K, WS_V = 0, 2 << 20, 4 << 20
WS_ACT = 6 << 20
ACT_RT = 144 * 1024
WS_STAT = WS_ACT + 64 * ACT_RT
WS_CSP = WS_STAT + 65536
WS_FLAG = 16 << 20
FL_1R, FL_1C, FL_2, FL_3, FL_4, FL_EPOCH = 0, 16, 32, 48, 64, 80
WS_BYTES = WS_FLAG + 128 * 128
S_TAG = 33
WS_DBG = 32 << 20

S_WAVE = 3
S_XCD, S_J, S_RB, S_CG, S_M, S_I = 4, 5, 6, 7, 8, 9
SRD_X, SRD_WQKV, SRD_WO, SRD_WG, SRD_WU, SRD_WD, SRD_OUT, SRD_DBG, SRD_WS = 36, 40, 44, 48, 52, 56, 60, 64, 68
LOG2E = 1.4426950408889634
QSCALE = 0.25 * LOG2E
def f32bits(x): return struct.unpack('<I', struct.pack('<f', x))[0]
def srd(n): return f"s[{n}:{n+3}]"
def vr(a, n=1): return f"v{a}" if n == 1 else f"v[{a}:{a+n-1}]"

BLK = 16384
NBLK = 9
LDS_MISC = 0
LDS_CS = LDS_MISC
LDS_ST = LDS_MISC + 5120
LDS_RS = LDS_MISC + 7168
LDS_CNT = LDS_MISC + 7680
LDS_TOTAL = 163840
def item_of(kind, s):
    return 2 * s if kind == 'X' else (2 * s + 1 if kind == 'W' else 16 + (s - 8))
def blk_addr(item): return BLK + (item % NBLK) * BLK
NITEMS = 28
def item_free_after(i):
    j = i - NBLK
    if j < 16: return j // 2 + 1
    return (j - 16 + 8) + 1

def stamp(a, idx, t0, t1):
    if not STAMPS: return
    a("s_memrealtime s[98:99]")
    a("s_memtime s[100:101]")
    a("s_waitcnt lgkmcnt(0)")
    a("s_lshl_b32 s99, s2, 3")
    a(f"s_add_u32 s99, s99, s{S_WAVE}")
    a("s_lshl_b32 s99, s99, 8")
    a(f"s_add_u32 s99, s99, {WS_DBG + idx*4}")
    a(f"v_mov_b32 v{t0}, s98")
    a(f"v_mov_b32 v{t1}, s99")
    a(f"buffer_store_dword v{t0}, v{t1}, {srd(SRD_WS)}, 0 offen")
    a(f"v_mov_b32 v{t0}, s100")
    a(f"buffer_store_dword v{t0}, v{t1}, {srd(SRD_WS)}, 0 offen offset:128")
NST = 2 if STAMPS else 0

def prologue(a):
    a("s_cmp_ge_u32 s2, 256")
    a("s_cbranch_scc1 L_exit")
    a("s_load_dwordx16 s[16:31], s[0:1], 0")
    a("s_load_dwordx4 s[32:35], s[0:1], 64")
    a("v_lshrrev_b32 v1, 6, v0")
    a("v_and_b32 v0, 63, v0")
    a(f"v_readfirstlane_b32 s{S_WAVE}, v1")
    a(f"s_and_b32 s{S_XCD}, s2, 7")
    a(f"s_lshr_b32 s{S_J}, s2, 3")
    a(f"s_and_b32 s10, s{S_XCD}, 1")
    a("s_lshl_b32 s10, s10, 3")
    a(f"s_and_b32 s11, s{S_J}, 7")
    a(f"s_add_u32 s{S_RB}, s10, s11")
    a(f"s_lshr_b32 s{S_M}, s{S_XCD}, 1")
    a(f"s_lshr_b32 s{S_I}, s{S_J}, 3")
    a(f"s_lshl_b32 s10, s{S_M}, 2")
    a(f"s_add_u32 s{S_CG}, s10, s{S_I}")
    units(a)
    a(f"s_and_b32 s{S_ROT}, s{S_J}, {int(os.environ.get('ROT', '0'))}")
    a("s_waitcnt lgkmcnt(0)")
    def mk(dst, lo, size):
        a(f"s_mov_b32 s{dst}, s{lo}")
        a(f"s_mov_b32 s{dst+1}, s{lo+1}")
        a(f"s_mov_b32 s{dst+2}, {size}")
        a(f"s_mov_b32 s{dst+3}, 0x20000")
    mk(SRD_X, 16, 2048 * 512 * 2)
    mk(SRD_WQKV, 18, 512 * 1536 * 2)
    mk(SRD_WO, 20, 512 * 512 * 2)
    mk(SRD_WG, 24, 512 * 1792 * 2)
    mk(SRD_WU, 26, 512 * 1792 * 2)
    mk(SRD_WD, 28, 1792 * 512 * 2)
    mk(SRD_OUT, 30, 2048 * 512 * 2)
    mk(SRD_DBG, 32, 256)
    mk(SRD_WS, 34, (64 << 20) if STAMPS else WS_BYTES)
    a(f"s_add_u32 s12, s34, {WS_FLAG + FL_EPOCH*128}")
    a("s_addc_u32 s13, s35, 0")
    a("s_load_dword s32, s[12:13], 0")

S_U_EARLY, S_U_LATE, S_U_Q2 = 90, 91, 92
S_ROT = 95
def units(a):
    a(f"s_mul_i32 s{S_U_EARLY}, s{S_M}, 7")
    a(f"s_lshl_b32 s14, s{S_I}, 1")
    a(f"s_add_u32 s{S_U_EARLY}, s{S_U_EARLY}, s14")
    a(f"s_cmp_eq_u32 s{S_I}, 3")
    a("s_cselect_b32 s14, 0, 1")
    a(f"s_add_u32 s{S_U_LATE}, s{S_U_EARLY}, s14")
    a(f"s_lshl_b32 s10, s{S_M}, 1")
    a(f"s_add_u32 s10, s10, s{S_I}")
    a("s_add_u32 s10, s10, 16")
    a(f"s_lshl_b32 s11, s{S_M}, 2")
    a(f"s_cmp_eq_u32 s{S_I}, 2")
    a("s_cselect_b32 s10, s11, s10")
    a("s_add_u32 s12, s11, 3")
    a(f"s_cmp_eq_u32 s{S_I}, 3")
    a(f"s_cselect_b32 s{S_U_Q2}, s12, s10")

def tile_addr_regs(a, VAP, VAQ, tmp):
    t = tmp
    a(f"v_lshrrev_b32 v{t}, 4, v0")
    a(f"v_and_b32 v{t+1}, 1, v{t}")
    a(f"v_lshrrev_b32 v{t+2}, 1, v{t}")
    a(f"v_and_b32 v{t+3}, 15, v0")
    a(f"v_lshrrev_b32 v{t+4}, 2, v{t+3}")
    a(f"v_and_b32 v{t+5}, 3, v{t+3}")
    a(f"v_lshlrev_b32 v{t+6}, 3, v{t+2}")
    a(f"v_add_u32 v{t+6}, v{t+6}, v{t+4}")
    a(f"v_lshlrev_b32 v{t+6}, 7, v{t+6}")
    a(f"v_and_b32 v{t+7}, 1, v{t+5}")
    a(f"v_lshlrev_b32 v{t+7}, 3, v{t+7}")
    a(f"v_add_u32 v{t+6}, v{t+6}, v{t+7}")
    a(f"v_lshrrev_b32 v{t+7}, 1, v{t+5}")
    a(f"v_lshlrev_b32 v{t+7}, 4, v{t+7}")
    a(f"v_lshrrev_b32 v{t+8}, 1, v{t+4}")
    a(f"v_lshlrev_b32 v{t+8}, 6, v{t+8}")
    a(f"v_xor_b32 v{t+7}, v{t+7}, v{t+8}")
    a(f"v_lshlrev_b32 v{t+8}, 5, v{t+1}")
    a(f"v_xor_b32 v{t+9}, v{t+7}, v{t+8}")
    a(f"v_add_u32 v{VAQ}, v{t+6}, v{t+9}")
    a(f"v_xor_b32 v{VAQ+1}, 64, v{VAQ}")
    a(f"v_lshlrev_b32 v{t+8}, 13, v{t+1}")
    a(f"v_add_u32 v{VAP}, v{VAQ}, v{t+8}")
    for j in range(1, 4): a(f"v_xor_b32 v{VAP+j}, {j*32}, v{VAP}")

def xfrag_addr(a, VAX, wave_sgpr_rows, tmp):
    t = tmp
    a(f"v_and_b32 v{t}, 31, v0")
    a(f"v_lshrrev_b32 v{t+1}, 5, v0")
    a(f"v_lshrrev_b32 v{t+2}, 1, v{t}")
    a(f"v_and_b32 v{t+2}, 7, v{t+2}")
    a(f"v_xor_b32 v{t+2}, v{t+2}, v{t+1}")
    a(f"v_lshlrev_b32 v{t+2}, 4, v{t+2}")
    a(f"v_lshlrev_b32 v{t}, 7, v{t}")
    a(f"v_add_u32 v{t}, v{t}, v{t+2}")
    a(f"v_add_u32 v{VAX}, s{wave_sgpr_rows}, v{t}")
    for kl in range(1, 4): a(f"v_xor_b32 v{VAX+kl}, {kl*32}, v{VAX}")

def pass_tiles(kind, npan=1):
    if kind == 'P': return [('P', j, 0) for j in range(4)]
    return [('Q', t, p * 8192) for p in range(npan) for t in range(2)]

def stage_info(s):
    if s < 8: return item_of('W', s), 4
    if s < 12: return item_of('S', s), 8
    return item_of('S', s), 4

H_VOX0, H_VOX1, H_VO1, H_VO2, H_VO3 = 1, 2, 3, 4, 5
H_AP, H_AQ, H_AX = 6, 10, 12
H_FR = 16
H_XF = 32
H_SUM = 48
H_CS = 56
H_ONE = 60
H_T = 62
S_HW = 80
S_SO1, S_SO2, S_SO3, S_ST1, S_SOX, S_HL = 76, 77, 78, 79, 81, 82
SRD_P1, SRD_P3 = 72, 84

NI = 4
def h_setup(a):
    t = H_T
    a(f"v_lshrrev_b32 v{t}, 3, v0")
    a(f"v_and_b32 v{t+1}, 7, v0")
    a(f"v_lshrrev_b32 v{t+2}, 4, v0")
    a(f"v_xor_b32 v{t+3}, v{t+1}, v{t+2}")
    a(f"v_lshlrev_b32 v{t+3}, 4, v{t+3}")
    a(f"v_lshlrev_b32 v{t+4}, 10, v{t}")
    a(f"v_add_u32 v{H_VOX0}, v{t+4}, v{t+3}")
    a(f"v_xor_b32 v{H_VOX1}, 64, v{H_VOX0}")
    a(f"v_and_b32 v{t+2}, 1, v{t+2}")
    a(f"v_lshlrev_b32 v{t+2}, 2, v{t+2}")
    a(f"v_xor_b32 v{t+1}, v{t+1}, v{t+2}")
    a(f"v_lshlrev_b32 v{t+1}, 4, v{t+1}")
    a("s_movk_i32 s10, 3072")
    a(f"v_mul_lo_u32 v{t+2}, v{t}, s10")
    a(f"v_add_u32 v{H_VO2}, v{t+2}, v{t+1}")
    a("s_movk_i32 s10, 3584")
    a(f"v_mul_lo_u32 v{t+2}, v{t}, s10")
    a(f"s_lshr_b32 s11, s{S_HW}, 1")
    a("s_lshl_b32 s12, s11, 5")
    a(f"v_xor_b32 v{t+3}, s12, v{t+1}")
    a(f"v_add_u32 v{H_VO3}, v{t+2}, v{t+3}")
    a("s_cmp_eq_u32 s11, 0")
    a(f"s_cselect_b32 s{SRD_P3}, s{SRD_WG}, s{SRD_WU}")
    a(f"s_cselect_b32 s{SRD_P3+1}, s{SRD_WG+1}, s{SRD_WU+1}")
    a(f"s_mov_b32 s{SRD_P3+2}, {512*1792*2}")
    a(f"s_mov_b32 s{SRD_P3+3}, 0x20000")
    a(f"s_and_b32 s15, s{S_HW}, 1")
    a("s_mul_i32 s12, s15, 32*3584")
    a(f"s_lshl_b32 s14, s{S_U_LATE}, 7")
    a(f"s_add_u32 s{S_SO3}, s14, s12")
    a(f"s_lshl_b32 s10, s{S_U_Q2}, 7")
    a("s_mul_i32 s12, s15, 32*3072")
    a(f"s_add_u32 s{S_SO2}, s10, s12")
    a(f"s_lshl_b32 s10, s{S_RB}, 17")
    a(f"s_lshl_b32 s12, s{S_HW}, 15")
    a(f"s_add_u32 s{S_SOX}, s10, s12")
    a(f"s_lshl_b32 s{S_HL}, s{S_HW}, 12")
    a(f"s_cmp_eq_u32 s{S_I}, 3")
    a("s_cbranch_scc1 L_h_typeB")
    a(f"v_mov_b32 v{H_VO1}, v{H_VO3}")
    a(f"s_mov_b32 s{SRD_P1}, s{SRD_P3}")
    a(f"s_mov_b32 s{SRD_P1+1}, s{SRD_P3+1}")
    a(f"s_mov_b32 s{SRD_P1+2}, {512*1792*2}")
    a(f"s_lshl_b32 s13, s{S_U_EARLY}, 7")
    a("s_mul_i32 s12, s15, 32*3584")
    a(f"s_add_u32 s{S_SO1}, s13, s12")
    a(f"s_movk_i32 s{S_ST1}, 3584")
    a("s_branch L_h_typeDone")
    a("L_h_typeB:")
    a(f"v_mov_b32 v{H_VO1}, v{H_VO2}")
    a(f"s_mov_b32 s{SRD_P1}, s{SRD_WQKV}")
    a(f"s_mov_b32 s{SRD_P1+1}, s{SRD_WQKV+1}")
    a(f"s_mov_b32 s{SRD_P1+2}, {512*1536*2}")
    a(f"s_lshl_b32 s11, s{S_M}, 2")
    a(f"s_lshr_b32 s10, s{S_HW}, 1")
    a("s_add_u32 s10, s10, s11")
    a("s_add_u32 s10, s10, 1")
    a("s_lshl_b32 s10, s10, 7")
    a("s_mul_i32 s12, s15, 32*3072")
    a(f"s_add_u32 s{S_SO1}, s10, s12")
    a(f"s_movk_i32 s{S_ST1}, 3072")
    a("L_h_typeDone:")
    a(f"s_mov_b32 s{SRD_P1+3}, 0x20000")

def h_item(a, i):
    base = blk_addr(i)
    def chunk(c):
        a(f"s_add_u32 s11, s{S_ROT}, {c}")
        a("s_and_b32 s11, s11, 7")
    if i < 16 and i % 2 == 0:
        s = i // 2
        chunk(s)
        a("s_lshl_b32 s11, s11, 7")
        a(f"s_add_u32 s11, s11, s{S_SOX}")
        for q in range(4):
            a(f"s_add_u32 s10, s11, {q*8*1024}")
            a(f"s_add_u32 m0, s{S_HL}, {base + q*1024}")
            a(f"buffer_load_dwordx4 v{H_VOX1 if q & 1 else H_VOX0}, {srd(SRD_X)}, s10 offen lds")
    elif i < 16:
        s = i // 2
        chunk(s)
        a("s_lshl_b32 s11, s11, 6")
        a(f"s_mul_i32 s11, s11, s{S_ST1}")
        a(f"s_add_u32 s11, s11, s{S_SO1}")
        a(f"s_lshl_b32 s12, s{S_ST1}, 3")
        for q in range(4):
            a(f"s_add_u32 m0, s{S_HL}, {base + q*1024}")
            a(f"buffer_load_dwordx4 v{H_VO1}, {srd(SRD_P1)}, s11 offen lds")
            if q < 3: a("s_add_u32 s11, s11, s12")
    else:
        s = i - 16 + 8
        if s < 12:
            a(f"s_lshr_b32 s11, s{S_HW}, 1")
            a(f"s_add_u32 s11, s11, s{S_ROT}")
            a(f"s_add_u32 s11, s11, {2*(s-8)}")
            a("s_and_b32 s11, s11, 7")
            a("s_mul_i32 s11, s11, 64*3072")
            a(f"s_add_u32 s11, s11, s{S_SO2}")
            v, sr, st = H_VO2, SRD_WQKV, 3072
        else:
            chunk(s - 12)
            a("s_mul_i32 s11, s11, 64*3584")
            a(f"s_add_u32 s11, s11, s{S_SO3}")
            v, sr, st = H_VO3, SRD_P3, 3584
        for q in range(4):
            a(f"s_add_u32 s10, s11, {8*q*st}")
            a(f"s_add_u32 m0, s{S_HL}, {base + q*1024}")
            a(f"buffer_load_dwordx4 v{v}, {srd(sr)}, s10 offen lds")

class AG:
    def __init__(self, regs): self.regs = regs; self.bias = 0
    def off(self, a, base):
        w = (base // (3 * BLK)) * 3 * BLK
        if w != self.bias:
            d = w - self.bias
            for r in self.regs:
                if d > 0: a(f"v_add_u32 v{r}, {d}, v{r}")
                else: a(f"v_subrev_u32 v{r}, {-d}, v{r}")
            self.bias = w
        return base - w

H_EP = 18
H_PL = 16
H_G = 20
NBAR = 15
WS_CS = WS_CSP
def h_loader(a):
    issued = []
    def outstanding(): return sum(n for t, n in issued)
    def wait_tags(need):
        idx = [k for k, (t, n) in enumerate(issued) if t in need]
        if not idx: return
        last = max(idx)
        a(f"s_waitcnt vmcnt({sum(n for t, n in issued[last+1:])})")
        del issued[:last + 1]
    def issue(i):
        while outstanding() + NI > 60:
            wait_tags([issued[0][0]])
        h_item(a, i); issued.append((i, NI))
    h_setup(a)
    a("s_waitcnt vmcnt(0)")
    epoch_ready(a)
    if os.environ.get("DELAYH"):
        a(f"s_mov_b32 s15, {os.environ['DELAYH']}")
        a("L_dly:")
        a("s_sleep 8")
        a("s_sub_u32 s15, s15, 1")
        a("s_cmp_lg_u32 s15, 0")
        a("s_cbranch_scc1 L_dly")
    nextitem = 0
    while nextitem < NBLK: issue(nextitem); nextitem += 1
    a(f"v_lshlrev_b32 v{H_T}, 2, v0")
    a(f"v_mov_b32 v{H_T+1}, 0")
    a(f"ds_write_b32 v{H_T}, v{H_T+1} offset:{LDS_CNT}")
    a(f"v_and_b32 v{H_T}, 15, v0")
    a(f"v_lshlrev_b32 v{H_T}, 2, v{H_T}")
    a(f"s_lshl_b32 s10, s{S_RB}, 7")
    a(f"s_add_u32 s10, s10, {FL_1R*128}")
    a(f"v_add_u32 v{H_T+1}, s10, v{H_T}")
    a(f"s_lshl_b32 s10, s{S_CG}, 7")
    a(f"s_add_u32 s10, s10, {FL_1C*128}")
    a(f"v_add_u32 v{H_T+2}, s10, v{H_T}")
    a("v_cmp_gt_u32 vcc, 16, v0")
    a(f"v_cndmask_b32 v{H_PL+1}, v{H_T+2}, v{H_T+1}, vcc")
    for s in range(0, NBAR):
        if s < 8: need = [item_of('X', s), item_of('W', s)]
        elif s < 14: need = [item_of('S', s)]
        else: need = [NITEMS - 1]
        wait_tags(need)
        if (STAMPS == 2 and s < 15) or (STAMPS == 1 and s in (0, 4, 8, 12)):
            stamp(a, 8 + s, H_T, H_T + 1); issued.append(('st', 2))
        if s in (0, 12): a("s_waitcnt lgkmcnt(0)")
        a("s_barrier")
        if s == 7:
            a(f"s_mov_b32 s14, {WS_FLAG}")
            a(f"buffer_load_dword v{H_PL}, v{H_PL+1}, {srd(SRD_WS)}, s14 offen sc1"); issued.append(('poll', 1))
        if s == 9:
            wait_tags(['poll'])
            a(f"s_add_u32 s13, s{S_TAG}, 1")
            a(f"v_cmp_ne_u32 vcc, s13, v{H_PL}")
            a("s_and_b64 vcc, vcc, 0xffffffff")
            a("s_cmp_eq_u64 vcc, 0")
            a("s_cbranch_scc1 L_h_pok")
            flag_wait(a, 32, 1, H_PL, H_PL + 1, "fw_prep")
            a("L_h_pok:")
            a(f"v_and_b32 v{H_T}, 31, v0")
            a(f"s_lshl_b32 s10, s{S_RB}, 7")
            a(f"s_lshl_b32 s11, s{S_HW}, 5")
            a("s_add_u32 s10, s10, s11")
            a(f"v_add_u32 v{H_T}, s10, v{H_T}")
            a(f"v_lshlrev_b32 v{H_T}, 4, v{H_T}")
            a(f"s_mov_b32 s10, {WS_STAT}")
            a(f"buffer_load_dwordx4 {vr(H_G,4)}, v{H_T}, {srd(SRD_WS)}, s10 offen sc1"); issued.append(('g', 1))
            a(f"v_lshlrev_b32 v{H_T+1}, 4, v0")
            a(f"s_mul_i32 s10, s{S_CG}, 1280")
            a(f"s_add_u32 s10, s10, {WS_CS}")
            a(f"s_mul_i32 s11, s{S_HW}, 320")
            a("s_add_u32 s10, s10, s11")
            a("s_mov_b64 exec, 0xfffff")
            a(f"buffer_load_dwordx4 {vr(H_G+4,4)}, v{H_T+1}, {srd(SRD_WS)}, s10 offen sc1"); issued.append(('g', 1))
            a("s_mov_b64 exec, -1")
        while nextitem < NITEMS and item_free_after(nextitem) <= s:
            issue(nextitem); nextitem += 1
        if s == 11:
            wait_tags(['g'])
            a(f"v_and_b32 v{H_T}, 31, v0")
            a(f"s_lshl_b32 s10, s{S_HW}, 5")
            a(f"v_add_u32 v{H_T}, s10, v{H_T}")
            a(f"v_lshlrev_b32 v{H_T+1}, 4, v{H_T}")
            a(f"v_lshlrev_b32 v{H_T}, 2, v{H_T}")
            a("s_mov_b64 exec, 0xffffffff")
            a(f"ds_write_b128 v{H_T+1}, {vr(H_G,4)} offset:{LDS_ST}")
            a(f"ds_write_b32 v{H_T}, v{H_G+1} offset:{LDS_RS}")
            a("s_mov_b64 exec, -1")
            a(f"v_lshlrev_b32 v{H_T}, 4, v0")
            a(f"s_mul_i32 s10, s{S_HW}, 320")
            a(f"v_add_u32 v{H_T}, s10, v{H_T}")
            a("s_mov_b64 exec, 0xfffff")
            a(f"ds_write_b128 v{H_T}, {vr(H_G+4,4)} offset:{LDS_CS}")
            a("s_mov_b64 exec, -1")

def h_phaseA(a):
    h_loader(a)
    a.forget_waits()

VX = 128
ACCX, ACCY = 64, 32
V_AP, V_AQ, V_AX = 1, 5, 8
V_ST = 7
V_T = 12
FR0, FR1 = 16, 32

def c_setup(a):
    tile_addr_regs(a, V_AP, V_AQ, 16)
    a(f"s_lshl_b32 s10, s{S_WAVE}, 12")
    xfrag_addr(a, V_AX, 10, 16)
    a(f"v_lshlrev_b32 v{V_ST}, 4, v0")
    a.c_agw = AG(list(range(V_AP, V_AP + 4)) + [V_AQ, V_AQ + 1])
    a.c_agx = AG(list(range(V_AX, V_AX + 4)))

S_FRT, S_FCB = 86, 87
def fin_ids(a):
    a(f"s_lshl_b32 s12, s{S_XCD}, 2")
    a(f"s_and_b32 s13, s{S_J}, 3")
    a(f"s_add_u32 s{S_FRT}, s12, s13")
    a(f"s_lshr_b32 s{S_FCB}, s{S_J}, 2")

def xlane_reduce(a, A, n, T):
    for e in range(4): a(f"v_permlane32_swap_b32 v{A+e}, v{A+e+4}")
    for e in range(4): a(f"v_add_f32 v{A+e}, v{A+e}, v{A+e+4}")
    for e in range(2): a(f"v_permlane16_swap_b32 v{A+e}, v{A+e+2}")
    for e in range(2): a(f"v_add_f32 v{A+e}, v{A+e}, v{A+e+2}")

def c_prep(a):
    L = 128
    a(f"s_cmp_eq_u32 s{S_WAVE}, 0")
    a("s_cbranch_scc0 L_prep_cs")
    a("v_lshlrev_b32 v2, 4, v0")
    a(f"s_lshl_b32 s10, s{S_RB}, 17")
    a(f"s_lshl_b32 s11, s{S_CG}, 13")
    a("s_add_u32 s10, s10, s11")
    for r in range(8):
        a(f"s_add_u32 s11, s10, {r*1024}")
        a(f"buffer_load_dwordx4 {vr(L+4*r,4)}, v2, {srd(SRD_X)}, s11 offen")
    a("v_mov_b32 v3, 0x3f803f80")
    S, Q = 16, 24
    for r in range(16): a(f"v_mov_b32 v{16+r}, 0")
    for r in range(8):
        a(f"s_waitcnt vmcnt({7-r})")
        for d in range(4):
            a(f"v_dot2_f32_bf16 v{S+r}, v{L+4*r+d}, v3, v{S+r}")
            a(f"v_dot2_f32_bf16 v{Q+r}, v{L+4*r+d}, v{L+4*r+d}, v{Q+r}")
    xlane_reduce(a, S, 8, 0); xlane_reduce(a, Q, 8, 0)
    for ror in (8, 4, 2, 1):
        for R in (S, S + 1, Q, Q + 1):
            a(f"v_add_f32_dpp v{R}, v{R}, v{R} row_ror:{ror} row_mask:0xf bank_mask:0xf")
    a("v_lshrrev_b32 v4, 4, v0")
    a("v_and_b32 v5, 1, v4")
    a("v_lshlrev_b32 v5, 1, v5")
    a("v_lshrrev_b32 v4, 1, v4")
    a("v_lshlrev_b32 v4, 2, v4")
    a("v_add_u32 v4, v4, v5")
    a(f"s_lshl_b32 s10, s{S_RB}, 7")
    a(f"s_lshl_b32 s11, s{S_CG}, 3")
    a("s_add_u32 s10, s10, s11")
    a("v_add_u32 v4, s10, v4")
    a("v_lshlrev_b32 v4, 4, v4")
    a("v_and_b32 v5, 15, v0")
    a("v_cmp_eq_u32 vcc, 0, v5")
    a("s_mov_b64 s[12:13], vcc")
    for e in range(2):
        m, q = S + e, Q + e
        O = 32 + 4 * e
        a(f"v_mul_f32 v{m}, {f32bits(1/512.0):#x}, v{m}")
        a(f"v_mul_f32 v{q}, {f32bits(1/512.0):#x}, v{q}")
        a(f"v_mul_f32 v{O}, v{m}, v{m}")
        a(f"v_sub_f32 v{q}, v{q}, v{O}")
        a(f"v_max_f32 v{q}, 0, v{q}")
        a(f"v_cvt_pk_bf16_f32 v{m}, v{m}, v{m}")
        a(f"v_cvt_pk_bf16_f32 v{q}, v{q}, v{q}")
        a(f"v_lshlrev_b32 v{q}, 16, v{q}")
        a(f"v_add_f32 v{q}, {f32bits(1e-5):#x}, v{q}")
        a(f"v_cvt_pk_bf16_f32 v{q}, v{q}, v{q}")
        a(f"v_lshlrev_b32 v{q}, 16, v{q}")
        a(f"v_sqrt_f32 v{q}, v{q}")
        a(f"v_cvt_pk_bf16_f32 v{q}, v{q}, v{q}")
        a(f"v_lshlrev_b32 v{O+2}, 16, v{q}")
        a(f"v_rcp_f32 v{O+1}, v{O+2}")
        a(f"v_xor_b32 v{O}, 0x80008000, v{m}")
        a(f"v_mov_b32 v{O+3}, 0")
    a(f"s_mov_b32 s10, {WS_STAT}")
    a("s_mov_b64 exec, s[12:13]")
    a(f"buffer_store_dwordx4 v[32:35], v4, {srd(SRD_WS)}, s10 offen sc1")
    a(f"buffer_store_dwordx4 v[36:39], v4, {srd(SRD_WS)}, s10 offen offset:16 sc1")
    a("s_mov_b64 exec, -1")
    a("s_branch L_prep_done")
    a("L_prep_cs:")
    a.forget_waits()
    a(f"s_sub_u32 s10, s{S_WAVE}, 1")
    a("s_lshl_b32 s10, s10, 4")
    a(f"s_add_u32 s10, s10, s{S_RB}")
    a("s_cmp_ge_u32 s10, 40")
    a("s_cbranch_scc1 L_prep_done")
    a("s_lshr_b32 s11, s10, 3")
    a("s_and_b32 s12, s10, 7")
    T = 76
    a(f"s_lshl_b32 s{T}, s{S_M}, 2")
    a(f"s_add_u32 s{T}, s{T}, 1")
    a(f"s_add_u32 s{T}, s{T}, s11")
    a(f"s_lshl_b32 s{T+1}, s11, 1")
    a(f"s_cmp_eq_u32 s{S_I}, 3")
    a(f"s_cselect_b32 s{T+2}, 2, s11")
    a(f"s_cselect_b32 s{T+3}, s{T}, s{S_U_EARLY}")
    a(f"s_cselect_b32 s{T+4}, s{T+1}, 0")
    a("s_cmp_eq_u32 s11, 2")
    a(f"s_cselect_b32 s{T+2}, 2, s{T+2}")
    a(f"s_cselect_b32 s{T+3}, s{S_U_Q2}, s{T+3}")
    a(f"s_cselect_b32 s{T+4}, 4, s{T+4}")
    a("s_cmp_ge_u32 s11, 3")
    a(f"s_sub_u32 s{T}, s11, 3")
    a("s_cmp_ge_u32 s11, 3")
    a(f"s_cselect_b32 s{T+2}, s{T}, s{T+2}")
    a(f"s_cselect_b32 s{T+3}, s{S_U_LATE}, s{T+3}")
    a(f"s_cselect_b32 s{T+4}, 6, s{T+4}")
    a(f"s_cmp_eq_u32 s{T+2}, 0")
    a(f"s_cselect_b32 s72, s{SRD_WG}, s{SRD_WU}")
    a(f"s_cselect_b32 s73, s{SRD_WG+1}, s{SRD_WU+1}")
    a(f"s_mov_b32 s74, {512*1792*2}")
    a(f"s_movk_i32 s{T+5}, 3584")
    a(f"s_cmp_eq_u32 s{T+2}, 2")
    a(f"s_cselect_b32 s72, s{SRD_WQKV}, s72")
    a(f"s_cselect_b32 s73, s{SRD_WQKV+1}, s73")
    a(f"s_cselect_b32 s74, {512*1536*2}, s74")
    a("s_mov_b32 s75, 0x20000")
    a(f"s_cselect_b32 s{T+5}, 3072, s{T+5}")
    a(f"s_lshl_b32 s{T}, s{T+4}, 5")
    a("s_lshl_b32 s13, s12, 3")
    a(f"s_add_u32 s{T+6}, s{T}, s13")
    a("s_lshr_b32 s13, s12, 1")
    a("s_lshl_b32 s13, s13, 5")
    a(f"s_add_u32 s{T}, s{T}, s13")
    a("s_and_b32 s13, s12, 1")
    a("s_lshl_b32 s13, s13, 3")
    a(f"s_add_u32 s{T}, s{T}, s13")
    a(f"s_lshl_b32 s13, s{T+2}, 4")
    a(f"s_add_u32 s{T}, s{T}, s13")
    a(f"s_cmp_eq_u32 s{T+2}, 2")
    a(f"s_cselect_b32 s{T+6}, s{T+6}, s{T}")
    a(f"s_lshl_b32 s14, s{T+3}, 7")
    a("s_lshl_b32 s13, s12, 4")
    a("s_add_u32 s14, s14, s13")
    a(f"v_mul_lo_u32 v6, v0, s{T+5}")
    a(f"s_lshl_b32 s13, s{T+5}, 6")
    for q in range(8):
        a(f"buffer_load_dwordx4 {vr(L+4*q,4)}, v6, s[72:75], s14 offen")
        if q < 7: a("s_add_u32 s14, s14, s13")
    a("v_mov_b32 v4, 0x00003f80")
    a("v_mov_b32 v5, 0x3f800000")
    A = 16
    for e in range(8): a(f"v_mov_b32 v{A+e}, 0")
    for q in range(8):
        a(f"s_waitcnt vmcnt({7-q})")
        for d in range(4):
            a(f"v_dot2_f32_bf16 v{A+2*d}, v{L+4*q+d}, v4, v{A+2*d}")
            a(f"v_dot2_f32_bf16 v{A+2*d+1}, v{L+4*q+d}, v5, v{A+2*d+1}")
    xlane_reduce(a, A, 8, 0)
    for ror in (8, 4, 2, 1):
        for e in range(2): a(f"v_add_f32_dpp v{A+e}, v{A+e}, v{A+e} row_ror:{ror} row_mask:0xf bank_mask:0xf")
    a("v_lshrrev_b32 v8, 4, v0")
    a("v_and_b32 v9, 1, v8")
    a("v_lshlrev_b32 v9, 1, v9")
    a("v_lshrrev_b32 v8, 1, v8")
    a("v_lshlrev_b32 v8, 2, v8")
    a("v_add_u32 v8, v8, v9")
    a(f"v_add_u32 v8, s{T+6}, v8")
    a("v_lshlrev_b32 v8, 2, v8")
    a(f"s_mul_i32 s14, s{S_CG}, 1280")
    a(f"s_add_u32 s14, s14, {WS_CSP}")
    a("v_and_b32 v9, 15, v0")
    a("v_cmp_eq_u32 vcc, 0, v9")
    a("s_mov_b64 s[12:13], vcc")
    a("s_mov_b64 exec, s[12:13]")
    a(f"buffer_store_dword v{A}, v8, {srd(SRD_WS)}, s14 offen sc1")
    a(f"buffer_store_dword v{A+1}, v8, {srd(SRD_WS)}, s14 offen offset:4 sc1")
    a("s_mov_b64 exec, -1")
    a("L_prep_done:")
    a.forget_waits()
    a.nop(8)

def epoch_ready(a):
    a("s_waitcnt lgkmcnt(0)")
    a(f"s_add_u32 s{S_TAG}, s32, 1")
    a(f"s_lshl_b32 s{S_TAG}, s{S_TAG}, 3")

def touch_t0(a, dst):
    a(f"s_cmp_ge_u32 s{S_WAVE}, 4")
    a("s_cbranch_scc1 L_tt_w")
    a("v_lshrrev_b32 v2, 3, v0")
    a("v_lshlrev_b32 v2, 10, v2")
    a("v_and_b32 v3, 7, v0")
    a("v_lshlrev_b32 v3, 7, v3")
    a("v_add_u32 v2, v2, v3")
    a(f"s_lshl_b32 s10, s{S_RB}, 17")
    a(f"s_lshl_b32 s11, s{S_I}, 15")
    a("s_add_u32 s10, s10, s11")
    a(f"s_lshl_b32 s11, s{S_WAVE}, 13")
    a("s_add_u32 s10, s10, s11")
    a(f"buffer_load_dword v{dst}, v2, {srd(SRD_X)}, s10 offen")
    a("s_branch L_tt_done")
    a("L_tt_w:")
    a(f"s_and_b32 s10, s{S_J}, 7")
    a("s_lshl_b32 s11, s10, 6")
    a("v_add_u32 v2, s11, v0")
    a("s_movk_i32 s12, 3584")
    a("v_mul_lo_u32 v3, v2, s12")
    a("s_movk_i32 s12, 3072")
    a("v_mul_lo_u32 v2, v2, s12")
    a(f"s_cmp_eq_u32 s{S_WAVE}, 6")
    a("s_cbranch_scc1 L_tt_6")
    a(f"s_cmp_eq_u32 s{S_WAVE}, 7")
    a("s_cbranch_scc1 L_tt_7")
    a(f"s_cmp_eq_u32 s{S_I}, 3")
    a("s_cbranch_scc1 L_tt_B")
    a(f"s_lshl_b32 s13, s{S_U_EARLY}, 7")
    a(f"s_cmp_eq_u32 s{S_WAVE}, 4")
    a("s_cbranch_scc0 L_tt_up")
    a(f"buffer_load_dword v{dst}, v3, {srd(SRD_WG)}, s13 offen")
    a("s_branch L_tt_done")
    a("L_tt_up:")
    a(f"buffer_load_dword v{dst}, v3, {srd(SRD_WU)}, s13 offen")
    a("s_branch L_tt_done")
    a("L_tt_B:")
    a(f"s_lshl_b32 s13, s{S_M}, 2")
    a(f"s_add_u32 s13, s13, s{S_WAVE}")
    a("s_sub_u32 s13, s13, 3")
    a("s_lshl_b32 s13, s13, 7")
    a(f"buffer_load_dword v{dst}, v2, {srd(SRD_WQKV)}, s13 offen")
    a("s_branch L_tt_done")
    a("L_tt_6:")
    a(f"s_lshl_b32 s13, s{S_U_Q2}, 7")
    a(f"buffer_load_dword v{dst}, v2, {srd(SRD_WQKV)}, s13 offen")
    a("s_branch L_tt_done")
    a("L_tt_7:")
    a(f"s_lshl_b32 s13, s{S_U_LATE}, 7")
    a(f"buffer_load_dword v{dst}, v3, {srd(SRD_WG)}, s13 offen")
    a(f"buffer_load_dword v{dst}, v3, {srd(SRD_WU)}, s13 offen")
    a("L_tt_done:")

def c_touch_w3(a, q, dst):
    tag = f"tw3_{q}"
    a(f"s_cmp_eq_u32 s{S_WAVE}, 0")
    a(f"s_cbranch_scc1 L_{tag}_skip")
    a(f"s_and_b32 s10, s{S_J}, 3")
    a("s_mul_i32 s11, s10, 576")
    a(f"s_sub_u32 s12, s{S_WAVE}, 1")
    a("s_mul_i32 s12, s12, 192")
    a("s_add_u32 s11, s11, s12")
    a(f"s_add_u32 s11, s11, {64*q}")
    a(f"s_lshl_b32 s13, s{S_FCB}, 7")
    a(f"v_lshlrev_b32 v{V_T}, 10, v0")
    a("s_cmp_lt_u32 s11, 1792")
    a(f"s_cbranch_scc0 L_{tag}_wo")
    a("s_lshl_b32 s11, s11, 10")
    a("s_add_u32 s13, s13, s11")
    a(f"buffer_load_dword v{dst}, v{V_T}, {srd(SRD_WD)}, s13 offen")
    a(f"s_branch L_{tag}_skip")
    a(f"L_{tag}_wo:")
    a("s_sub_u32 s11, s11, 1792")
    a("s_lshl_b32 s11, s11, 10")
    a("s_add_u32 s13, s13, s11")
    a(f"buffer_load_dword v{dst}, v{V_T}, {srd(SRD_WO)}, s13 offen")
    a(f"L_{tag}_skip:")

class Pass:
    def __init__(self, a, tiles, swap, acc0, first_stage, nstages, kps, frsets, loadx=False):
        self.a, self.tiles, self.swap, self.acc0 = a, tiles, swap, acc0
        self.fs, self.ns, self.kps, self.frsets, self.loadx = first_stage, nstages, kps, frsets, loadx
        self.nks = nstages * kps
    def reads(self, ks, tl, withx):
        a = self.a
        if os.environ.get("NOC"): return 0
        s = self.fs + ks // self.kps; kl = ks % self.kps
        it, _ = stage_info(s)
        base = a.c_agw.off(a, blk_addr(it)) + kl * 2048
        fs = self.frsets[ks & 1]
        n = 0
        if withx and self.loadx:
            xb = a.c_agx.off(a, blk_addr(item_of('X', s)))
            a(f"ds_read_b128 {vr(VX+4*ks,4)}, v{V_AX+kl} offset:{xb}"); n += 1
        for t in tl:
            k, idx, imm = self.tiles[t]
            av = (V_AP if k == 'P' else V_AQ) + idx
            a(f"ds_read_b64_tr_b16 {vr(fs+4*t,2)}, v{av} offset:{base+imm}")
            a(f"ds_read_b64_tr_b16 {vr(fs+4*t+2,2)}, v{av} offset:{base+imm+512}")
            n += 2
        return n
    def entry(self):
        self.a("s_barrier")
        self.reads(0, range(len(self.tiles)), True)
    def body(self, first_reads_done_waited=False, pre_barrier=None, post_barrier=None):
        a = self.a; T = len(self.tiles); NB_LAST = 14
        for ks in range(self.nks):
            nxt = ks + 1
            has_next = nxt < self.nks
            snext = self.fs + nxt // self.kps
            boundary = has_next and (nxt % self.kps == 0) and snext <= NB_LAST
            fs = self.frsets[ks & 1]
            if boundary:
                a("s_waitcnt lgkmcnt(0)")
                if pre_barrier: pre_barrier(snext)
                a("s_barrier")
                if STAMPS == 2: stamp(a, 13 + snext, 12, 13)
                if post_barrier: post_barrier(snext)
            half = (T + 1) // 2
            issued_next = 0
            for t in range(T):
                if not boundary and not (ks == 0 and first_reads_done_waited):
                    n_after = 2 * (T - 1 - t) + issued_next
                    a(f"s_waitcnt lgkmcnt({min(n_after, 15)})")
                acc = vr(self.acc0 + 16 * t, 16)
                c = acc if ks > 0 else "0"
                x = vr(VX + 4 * ks, 4); w = vr(fs + 4 * t, 4)
                if os.environ.get("NOC") or os.environ.get("NOMFMA"): pass
                elif self.swap: a(f"v_mfma_f32_32x32x16_bf16 {acc}, {x}, {w}, {c}")
                else: a(f"v_mfma_f32_32x32x16_bf16 {acc}, {w}, {x}, {c}")
                if has_next:
                    if t == 0: issued_next += self.reads(nxt, range(0, half), True)
                    elif t == 1: issued_next += self.reads(nxt, range(half, T), False)

def epi_common(a, E, tile0, ntiles):
    a(f"v_and_b32 v{V_T}, 31, v0")
    a(f"s_lshl_b32 s10, s{S_WAVE}, 5")
    a(f"v_add_u32 v{V_T+1}, s10, v{V_T}")
    a(f"v_lshlrev_b32 v{V_T+1}, 4, v{V_T+1}")
    a(f"ds_read_b128 {vr(E,4)}, v{V_T+1} offset:{LDS_ST}")
    a(f"v_lshlrev_b32 v{V_T}, 2, v{V_T}")
    a(f"v_add_u32 v{V_T}, {LDS_CS}, v{V_T}")
    for t in range(ntiles):
        a(f"ds_read_b32 v{E+12+t}, v{V_T} offset:{(tile0+t)*128}")
    a("s_waitcnt lgkmcnt(0)")
    a("s_mov_b32 exec_lo, 0")
    for t in range(ntiles): a(f"v_mov_b32 v{E+12+t}, 0")
    a("s_mov_b64 exec, -1")
    for r in (5, 6, 7, 9, 10, 11, 4): a(f"v_mov_b32 v{E+r}, 0")
    a("s_waitcnt lgkmcnt(0)")
    a("s_mov_b64 exec, 0xffffffff")
    a(f"v_mov_b32 v{E+4}, v{E}")
    a("s_mov_b64 exec, -1")

def epi_meancorr(a, E, t, acc, swap):
    c = E + 12 + t
    a(f"v_cvt_pk_bf16_f32 v{V_T}, v{c}, v{c}")
    a(f"v_lshlrev_b32 v{V_T}, 16, v{V_T}")
    a(f"v_sub_f32 v{V_T}, v{c}, v{V_T}")
    a(f"v_cvt_pk_bf16_f32 v{E+8}, v{c}, v{V_T}")
    A = vr(acc, 16)
    if swap: a(f"v_mfma_f32_32x32x16_bf16 {A}, {vr(E+4,4)}, {vr(E+8,4)}, {A}")
    else: a(f"v_mfma_f32_32x32x16_bf16 {A}, {vr(E+8,4)}, {vr(E+4,4)}, {A}")

def epi_pair_unit(a, acc, unit_sgpr, tile0, E):
    epi_common(a, E, tile0, 4)
    for t in range(4): epi_meancorr(a, E, t, acc + 16 * t, False)
    a(f"v_mul_f32 v{E+3}, {f32bits(-LOG2E):#x}, v{E+1}")
    a(f"s_lshl_b32 s13, s{S_RB}, 2")
    a(f"s_add_u32 s13, s13, s{S_WAVE}")
    a(f"s_mul_i32 s13, s13, {ACT_RT}")
    a(f"s_lshl_b32 s14, s{unit_sgpr}, 12")
    a("s_add_u32 s13, s13, s14")
    a(f"s_add_u32 s13, s13, {WS_ACT}")
    for j in range(4):
        A = acc + 16 * j
        for r in range(8): a(f"v_mul_f32 v{A+r}, v{A+r}, v{E+3}")
        for r in range(8): a(f"v_exp_f32 v{A+r}, v{A+r}")
        for r in range(8): a(f"v_fma_f32 v{A+r}, v{A+r}, v{E+2}, v{E+2}")
        for r in range(8): a(f"v_rcp_f32 v{A+r}, v{A+r}")
        for r in range(8): a(f"v_mul_f32 v{A+r}, v{A+r}, v{A+8+r}")
        for r in range(4): a(f"v_cvt_pk_bf16_f32 v{A+8+r}, v{A+2*r}, v{A+2*r+1}")
        a(f"buffer_store_dwordx4 {vr(A+8,4)}, v{V_ST}, {srd(SRD_WS)}, s13 offen offset:{j*1024} sc1")

def qk_lane_off(a, dst):
    a(f"v_and_b32 v{dst}, 31, v0")
    a(f"v_lshlrev_b32 v{dst}, 5, v{dst}")
    a(f"v_lshrrev_b32 v{V_T}, 5, v0")
    a(f"v_lshlrev_b32 v{V_T}, 4, v{V_T}")
    a(f"v_add_u32 v{dst}, v{dst}, v{V_T}")

def epi_n_units(a, acc, unit_sgprs, tile0, E):
    nt = 2 * len(unit_sgprs)
    epi_common(a, E, tile0, nt)
    for t in range(nt): epi_meancorr(a, E, t, acc + 16 * t, False)
    qk_lane_off(a, V_T + 2)
    for ui, us in enumerate(unit_sgprs):
        a(f"s_mov_b32 s12, {f32bits(QSCALE):#x}")
        a(f"s_cmp_lt_u32 s{us}, 8")
        a("s_cselect_b32 s12, s12, 1.0")
        a(f"v_mul_f32 v{E+3}, s12, v{E+1}")
        a(f"s_lshl_b32 s13, s{us}, 18")
        a(f"s_lshl_b32 s14, s{S_RB}, 12")
        a("s_add_u32 s13, s13, s14")
        a(f"s_lshl_b32 s14, s{S_WAVE}, 10")
        a("s_add_u32 s13, s13, s14")
        for t in range(2):
            A = acc + 16 * (2 * ui + t)
            for r in range(16): a(f"v_mul_f32 v{A+r}, v{A+r}, v{E+3}")
            for r in range(8): a(f"v_cvt_pk_bf16_f32 v{A+r}, v{A+2*r}, v{A+2*r+1}")
            a(f"buffer_store_dwordx4 {vr(A,4)}, v{V_T+2}, {srd(SRD_WS)}, s13 offen sc1")
            a("s_add_u32 s13, s13, 65536")
            a(f"buffer_store_dwordx4 {vr(A+4,4)}, v{V_T+2}, {srd(SRD_WS)}, s13 offen sc1")
            a("s_add_u32 s13, s13, 65536")

def epi_v_unit(a, acc, unit_sgpr, tile0, E):
    epi_common(a, E, tile0, 2)
    for t in range(2): epi_meancorr(a, E, t, acc + 16 * t, True)
    a(f"v_lshrrev_b32 v{V_T}, 5, v0")
    a(f"v_lshlrev_b32 v{V_T}, 4, v{V_T}")
    a(f"s_lshl_b32 s10, s{S_WAVE}, 7")
    a(f"v_add_u32 v{V_T}, s10, v{V_T}")
    R = ACCX
    for q in range(4): a(f"ds_read_b128 {vr(R+4*q,4)}, v{V_T} offset:{LDS_RS + q*32}")
    a(f"v_and_b32 v{V_T+2}, 15, v0")
    a(f"v_lshlrev_b32 v{V_T+2}, 5, v{V_T+2}")
    a(f"v_lshrrev_b32 v{V_T+3}, 5, v0")
    a(f"v_lshlrev_b32 v{V_T+3}, 4, v{V_T+3}")
    a(f"v_add_u32 v{V_T+2}, v{V_T+2}, v{V_T+3}")
    a(f"v_lshrrev_b32 v{V_T+3}, 4, v0")
    a(f"v_and_b32 v{V_T+3}, 1, v{V_T+3}")
    a(f"v_lshlrev_b32 v{V_T+3}, 16, v{V_T+3}")
    a(f"v_add_u32 v{V_T+2}, v{V_T+2}, v{V_T+3}")
    a(f"s_lshl_b32 s13, s{unit_sgpr}, 18")
    a(f"s_lshl_b32 s14, s{S_RB}, 12")
    a("s_add_u32 s13, s13, s14")
    a(f"s_lshl_b32 s14, s{S_WAVE}, 10")
    a("s_add_u32 s13, s13, s14")
    a("s_waitcnt lgkmcnt(0)")
    for t in range(2):
        A = acc + 16 * t
        for r in range(16): a(f"v_mul_f32 v{A+r}, v{A+r}, v{R+r}")
        for r in range(8): a(f"v_cvt_pk_bf16_f32 v{A+r}, v{A+2*r}, v{A+2*r+1}")
        a(f"buffer_store_dwordx4 {vr(A,4)}, v{V_T+2}, {srd(SRD_WS)}, s13 offen sc1")
        a(f"buffer_store_dwordx4 {vr(A+4,4)}, v{V_T+2}, {srd(SRD_WS)}, s13 offen offset:512 sc1")
        a("s_add_u32 s13, s13, 131072")

def c_phaseA(a):
    fin_ids(a)
    if not os.environ.get("NOPREP"): c_prep(a)
    epoch_ready(a)
    c_setup(a)
    stamp(a, 1, 12, 13)
    P3 = Pass(a, pass_tiles('P'), False, ACCX, 12, 8, 4, (FR0, FR1))
    def pre1(sn):
        if sn == 2: a("s_waitcnt vmcnt(0)")
    def post1(sn):
        if sn == 1:
            a(f"s_cmp_eq_u32 s{S_WAVE}, 3")
            a("s_cbranch_scc0 L_tw3_ep")
            a(f"v_mov_b32 v{V_T}, 0")
            a("v_mov_b32 v49, 1")
            a("s_mov_b64 exec, 1")
            a(f"buffer_atomic_add v49, v{V_T}, {srd(SRD_DBG)}, 0 offen sc0 sc1")
            a("s_mov_b64 exec, -1")
            a("L_tw3_ep:")
        if sn == 2:
            a(f"s_cmp_eq_u32 s{S_WAVE}, 0")
            a("s_cbranch_scc0 L_tw3_f1")
            flag_set(a, 1, V_T, V_T + 1)
            a("L_tw3_f1:")
        if sn in (3, 4, 5) and not os.environ.get("NOW3T"): c_touch_w3(a, sn - 3, 48)
    a(f"s_cmp_eq_u32 s{S_I}, 3")
    a("s_cbranch_scc1 L_c_p1B")
    st = (a.c_agw.bias, a.c_agx.bias)
    import re
    for var in ('A', 'B'):
        if var == 'B':
            a()if False else None
            a("L_c_p1B:"); a.forget_waits(); a.c_agw.bias, a.c_agx.bias = st
        n0 = len(a.lines)
        P1 = Pass(a, pass_tiles('P') if var == 'A' else pass_tiles('Q', 2), False, ACCX, 0, 8, 4, (FR0, FR1), loadx=True)
        P1.entry()
        P1.body(pre_barrier=pre1, post_barrier=post1)
        for k in range(n0, len(a.lines)): a.lines[k] = re.sub(r"L_tw3_(\w+)", lambda m: f"L_tw3{var}_{m.group(1)}", a.lines[k])
        if var == 'A': a("s_branch L_c_p1done")
    a("L_c_p1done:")
    stamp(a, 2, 12, 13)
    a("s_waitcnt vmcnt(0)")
    a(f"s_cmp_eq_u32 s{S_WAVE}, 3")
    a("s_cbranch_scc0 L_c_noep2")
    a("v_readfirstlane_b32 s10, v49")
    a("s_cmp_eq_u32 s10, 255")
    a("s_cbranch_scc0 L_c_noep2")
    a("s_add_u32 s10, s32, 1")
    a(f"v_mov_b32 v{V_T}, s10")
    a(f"v_mov_b32 v{V_T+1}, {WS_FLAG + FL_EPOCH*128}")
    a("s_mov_b64 exec, 1")
    a(f"buffer_store_dword v{V_T}, v{V_T+1}, {srd(SRD_WS)}, 0 offen sc1")
    a("s_mov_b64 exec, -1")
    a("L_c_noep2:")
    a("s_barrier")
    def post2(sn):
        pass
    a(f"s_cmp_lt_u32 s{S_I}, 2")
    a("s_cbranch_scc1 L_c_p2V")
    st = (a.c_agw.bias, a.c_agx.bias)
    for var in ('N', 'V'):
        if var == 'V':
            a("L_c_p2V:"); a.forget_waits(); a.c_agw.bias, a.c_agx.bias = st
        n0 = len(a.lines)
        P2 = Pass(a, pass_tiles('Q', 1), var == 'V', ACCY, 8, 4, 8, (FR0, FR0 + 8))
        P2.reads(0, range(2), False)
        P2.body(post_barrier=post2)
        for k in range(n0, len(a.lines)): a.lines[k] = re.sub(r"L_tw3_(\w+)", lambda m: f"L_tw3{var}_{m.group(1)}", a.lines[k])
        if var == 'N': a("s_branch L_c_p2done")
    a("L_c_p2done:")
    stamp(a, 4, 12, 13)
    a("s_barrier")
    a(f"s_cmp_eq_u32 s{S_I}, 3")
    a("s_cbranch_scc1 L_c_e1B")
    epi_pair_unit(a, ACCX, S_U_EARLY, 0, FR0)
    a("s_branch L_c_e1done")
    a("L_c_e1B:")
    a(f"s_lshl_b32 s93, s{S_M}, 2")
    a("s_add_u32 s93, s93, 1")
    a("s_add_u32 s94, s93, 1")
    epi_n_units(a, ACCX, [93, 94], 0, FR0)
    a("L_c_e1done:")
    a.nop(16)
    stamp(a, 3, 12, 13)
    a(f"s_cmp_lt_u32 s{S_I}, 2")
    a("s_cbranch_scc1 L_c_e2V")
    epi_n_units(a, ACCY, [S_U_Q2], 4, FR0)
    a("s_branch L_c_e2done")
    a("L_c_e2V:")
    epi_v_unit(a, ACCY, S_U_Q2, 4, FR0)
    a("L_c_e2done:")
    a.nop(16)
    stamp(a, 5, 12, 13)
    P3.reads(0, range(4), False)
    def pre3(snext):
        if snext == 14: a("s_waitcnt vmcnt(0)")
    def post3(snext):
        if snext == 14:
            a(f"s_cmp_eq_u32 s{S_WAVE}, 0")
            a("s_cbranch_scc0 L_c_nof2")
            flag_set(a, 2, V_T, V_T + 1)
            a("L_c_nof2:")
    P3.body(pre_barrier=pre3, post_barrier=post3)
    stamp(a, 6, 12, 13)
def flag_store(a, line_sgpr_expr, stage, t0, t1):
    a(f"s_add_u32 s11, s{S_TAG}, {stage}")
    a(f"v_mov_b32 v{t0}, s11")
    a(f"v_mov_b32 v{t1}, s10")
    a(f"s_mov_b32 s11, {WS_FLAG}")
    a("s_mov_b64 exec, 1")
    a(f"buffer_store_dword v{t0}, v{t1}, {srd(SRD_WS)}, s11 offen sc1")
    a("s_mov_b64 exec, -1")

def flag_set(a, stage, t0, t1):
    if stage == 1:
        a(f"s_lshl_b32 s10, s{S_RB}, 7")
        a(f"s_lshl_b32 s12, s{S_CG}, 2")
        a("s_add_u32 s10, s10, s12")
        a(f"s_add_u32 s10, s10, {FL_1R*128}")
        flag_store(a, None, 1, t0, t1)
        a(f"s_lshl_b32 s10, s{S_CG}, 7")
        a(f"s_lshl_b32 s12, s{S_RB}, 2")
        a("s_add_u32 s10, s10, s12")
        a(f"s_add_u32 s10, s10, {FL_1C*128}")
        flag_store(a, None, 1, t0, t1)
    elif stage in (2, 3):
        a(f"s_lshl_b32 s10, s{S_RB}, 7")
        a(f"s_lshl_b32 s12, s{S_CG}, 2")
        a("s_add_u32 s10, s10, s12")
        a(f"s_add_u32 s10, s10, {(FL_2 if stage == 2 else FL_3)*128}")
        flag_store(a, None, stage, t0, t1)
    else:
        a(f"s_lshr_b32 s10, s{S_RB}, 1")
        a("s_lshl_b32 s10, s10, 7")
        a(f"s_and_b32 s12, s{S_RB}, 1")
        a("s_lshl_b32 s12, s12, 4")
        a(f"s_add_u32 s12, s12, s{S_CG}")
        a("s_lshl_b32 s12, s12, 2")
        a("s_add_u32 s10, s10, s12")
        a(f"s_add_u32 s10, s10, {FL_4*128}")
        flag_store(a, None, 4, t0, t1)

def flag_wait(a, nlanes, stage, t0, voff, tag, sleep=4):
    if NOFLAG: return
    a(f"s_add_u32 s13, s{S_TAG}, {stage}")
    a(f"s_mov_b32 s14, {WS_FLAG}")
    a("s_mov_b32 s15, 0")
    a(f"L_{tag}:")
    a("s_add_u32 s15, s15, 1")
    a("s_cmp_gt_u32 s15, 100000")
    a(f"s_cbranch_scc1 L_{tag}_ok")
    a(f"buffer_load_dword v{t0}, v{voff}, {srd(SRD_WS)}, s14 offen sc1")
    a("s_waitcnt vmcnt(0)")
    a(f"v_cmp_ne_u32 vcc, s13, v{t0}")
    if nlanes < 64:
        if nlanes <= 32: a(f"s_and_b64 vcc, vcc, {(1 << nlanes) - 1:#x}")
    a("s_cmp_eq_u64 vcc, 0")
    a(f"s_cbranch_scc1 L_{tag}_ok")
    a(f"s_sleep {sleep}")
    a(f"s_branch L_{tag}")
    a(f"L_{tag}_ok:")

def wg_wait(a, poller_cond_sgpr, poller_val, setup_voff, nlanes, stage, cnt_off, t0, t1, tag):
    a(f"s_cmp_eq_u32 s{poller_cond_sgpr}, {poller_val}")
    a(f"s_cbranch_scc0 L_{tag}_np")
    setup_voff(t1)
    flag_wait(a, nlanes, stage, t0, t1, tag)
    lds_inc(a, cnt_off, t0, t1)
    a(f"s_branch L_{tag}_dn")
    a(f"L_{tag}_np:")
    lds_wait_count(a, cnt_off, 1, t0, t1, tag + "_l")
    a(f"L_{tag}_dn:")

def lds_arrive_last(a, cnt_off, t0, t1, tag, n=4):
    a(f"v_mov_b32 v{t0}, {cnt_off}")
    a(f"v_mov_b32 v{t1}, 1")
    a("s_mov_b64 exec, 1")
    a(f"ds_add_rtn_u32 v{t1}, v{t0}, v{t1}")
    a("s_waitcnt lgkmcnt(0)")
    a("s_mov_b64 exec, -1")
    a(f"v_readfirstlane_b32 s10, v{t1}")
    a(f"s_cmp_eq_u32 s10, {n-1}")
    a(f"s_cbranch_scc0 L_{tag}_skip")

def lds_inc(a, cnt_off, t0, t1):
    a(f"v_mov_b32 v{t0}, {cnt_off}")
    a(f"v_mov_b32 v{t1}, 1")
    a("s_mov_b64 exec, 1")
    a(f"ds_add_u32 v{t0}, v{t1}")
    a("s_mov_b64 exec, -1")

def lds_wait_count(a, cnt_off, n, t0, t1, tag):
    a(f"v_mov_b32 v{t0}, {cnt_off}")
    a("s_mov_b32 s15, 0")
    a(f"L_{tag}:")
    a("s_add_u32 s15, s15, 1")
    a("s_cmp_gt_u32 s15, 1000000")
    a(f"s_cbranch_scc1 L_{tag}_ok")
    a(f"ds_read_b32 v{t1}, v{t0}")
    a("s_waitcnt lgkmcnt(0)")
    a(f"v_readfirstlane_b32 s10, v{t1}")
    a(f"s_cmp_ge_u32 s10, {n}")
    a(f"s_cbranch_scc1 L_{tag}_ok")
    a("s_sleep 1")
    a(f"s_branch L_{tag}")
    a(f"L_{tag}_ok:")

AT_Q, AT_K, AT_V, AT_S, AT_O, AT_NM, AT_BD, AT_BO, AT_P, AT_T = 8, 16, 52, 124, 172, 188, 204, 220, 236, 2
S_QB0, S_HEAD = 93, 94
BIG = 1.0e30

def at_setup(a):
    a(f"s_and_b32 s10, s{S_RB}, 1")
    a("s_lshl_b32 s10, s10, 4")
    a(f"s_add_u32 s{S_HEAD}, s10, s{S_CG}")
    a(f"s_lshr_b32 s10, s{S_RB}, 1")
    a("s_lshl_b32 s10, s10, 3")
    a(f"s_lshl_b32 s11, s{S_HW}, 1")
    a(f"s_add_u32 s{S_QB0}, s10, s11")
    a("v_and_b32 v2, 31, v0")
    a("v_lshrrev_b32 v4, 5, v0")
    a("v_lshlrev_b32 v5, 4, v4")
    a("v_lshlrev_b32 v3, 5, v2")
    a("v_add_u32 v1, v3, v5")
    a("v_lshlrev_b32 v4, 2, v4")
    a("v_sub_u32 v4, v2, v4")
    a(f"v_mov_b32 v5, {f32bits(-BIG):#x}")
    for r in range(16):
        kr = (r & 3) + 8 * (r >> 2)
        a(f"v_cmp_le_i32 vcc, {kr}, v4")
        a(f"v_cndmask_b32_e64 v{AT_BD+r}, v5, 0, vcc")
        a(f"v_cndmask_b32_e64 v{AT_BO+r}, 0, v5, vcc")
    for r in range(72): a(f"v_mov_b32 v{AT_V+r}, 0x3f803f80")
    a("s_mov_b32 s96, 0x0000ffff")
    a("s_mov_b32 s97, 0x0000ffff")

def at_load_kv(a, slot, j):
    a(f"s_add_i32 s10, s{S_QB0}, {j-8}")
    a("s_max_i32 s10, s10, 0")
    a("s_lshl_b32 s10, s10, 10")
    a(f"s_lshl_b32 s11, s{S_HEAD}, 16")
    a("s_add_u32 s10, s10, s11")
    a(f"s_add_u32 s11, s10, {WS_K}")
    a(f"buffer_load_dwordx4 {vr(AT_K+4*slot,4)}, v1, {srd(SRD_WS)}, s11 offen sc1")
    a(f"s_add_u32 s11, s10, {WS_V}")
    a("s_mov_b64 exec, s[96:97]")
    a(f"buffer_load_dwordx4 {vr(AT_V+8*slot,4)}, v1, {srd(SRD_WS)}, s11 offen sc1")
    a(f"buffer_load_dwordx4 {vr(AT_V+8*slot+4,4)}, v1, {srd(SRD_WS)}, s11 offen offset:512 sc1")
    a("s_mov_b64 exec, -1")

def at_loads(a):
    a(f"s_lshl_b32 s11, s{S_HEAD}, 16")
    a(f"s_lshl_b32 s10, s{S_QB0}, 10")
    a("s_add_u32 s10, s10, s11")
    a(f"buffer_load_dwordx4 {vr(AT_Q,4)}, v1, {srd(SRD_WS)}, s10 offen sc1")
    a(f"buffer_load_dwordx4 {vr(AT_Q+4,4)}, v1, {srd(SRD_WS)}, s10 offen offset:1024 sc1")
    for j in range(9): at_load_kv(a, j, j)

def at_item(a, it, fast, tag):
    q = vr(AT_Q + 4 * it, 4)
    slot = lambda j: (j + it) % 9
    K = lambda j: vr(AT_K + 4 * slot(j), 4)
    V1 = lambda j: vr(AT_V + 8 * slot(j), 4)
    V2 = lambda j: vr(AT_V + 8 * slot(j) + 4, 4)
    S = lambda b: AT_S + 16 * b
    M = AT_T
    if not fast:
        a(f"s_add_u32 s10, s{S_QB0}, {it}")
        a("s_sub_i32 s95, 8, s10")
        a("s_max_i32 s95, s95, 0")
    a(f"v_mov_b32 v{M}, {f32bits(-BIG):#x}")
    cop = lambda j: vr(AT_BO, 16) if j == 0 else (vr(AT_BD, 16) if j == 8 else "0")
    def maxops(b):
        for r in range(0, 16, 2): a(f"v_max3_f32 v{M}, v{S(b)+r}, v{S(b)+r+1}, v{M}")
    if fast:
        a(f"v_mfma_f32_32x32x16_bf16 {vr(S(0),16)}, {K(0)}, {q}, {cop(0)}")
        a(f"v_mfma_f32_32x32x16_bf16 {vr(S(1),16)}, {K(1)}, {q}, {cop(1)}")
        for j in range(9):
            if j + 2 < 9: a(f"v_mfma_f32_32x32x16_bf16 {vr(S((j+2)%3),16)}, {K(j+2)}, {q}, {cop(j+2)}")
            maxops(j % 3)
    else:
        for j in range(9):
            a(f"s_cmp_gt_i32 s95, {j}")
            a(f"s_cbranch_scc1 L_{tag}_p1_{j}")
            a(f"v_mfma_f32_32x32x16_bf16 {vr(S(0),16)}, {K(j)}, {q}, {cop(j)}")
            maxops(0)
            a(f"L_{tag}_p1_{j}:")
            a.nop(8)
    a(f"v_mov_b32 v{M+1}, v{M}")
    a(f"v_permlane32_swap_b32 v{M}, v{M+1}")
    a(f"v_max_f32 v{M}, v{M}, v{M+1}")
    a(f"v_sub_f32 v{M}, 0, v{M}")
    for r in range(16): a(f"v_mov_b32 v{AT_NM+r}, v{M}")
    def qk(j, b):
        if j == 0 or j == 8:
            bias = AT_BO if j == 0 else AT_BD
            for r in range(16): a(f"v_add_f32 v{S(b)+r}, v{bias+r}, v{M}")
            a(f"v_mfma_f32_32x32x16_bf16 {vr(S(b),16)}, {K(j)}, {q}, {vr(S(b),16)}")
        else:
            a(f"v_mfma_f32_32x32x16_bf16 {vr(S(b),16)}, {K(j)}, {q}, {vr(AT_NM,16)}")
    def soft(j, b, pb):
        for r in range(16): a(f"v_exp_f32 v{S(b)+r}, v{S(b)+r}")
        for r in range(8): a(f"v_cvt_pk_bf16_f32 v{AT_P+8*pb+r}, v{S(b)+2*r}, v{S(b)+2*r+1}")
    def pv(j, pb, first):
        c = "0" if first else vr(AT_O, 16)
        a(f"v_mfma_f32_32x32x16_bf16 {vr(AT_O,16)}, {V1(j)}, {vr(AT_P+8*pb,4)}, {c}")
        a(f"v_mfma_f32_32x32x16_bf16 {vr(AT_O,16)}, {V2(j)}, {vr(AT_P+8*pb+4,4)}, {vr(AT_O,16)}")
    if fast:
        qk(0, 0); qk(1, 1)
        for j in range(9):
            if j + 2 < 9: qk(j + 2, (j + 2) % 3)
            soft(j, j % 3, j & 1)
            pv(j, j & 1, j == 0)
    else:
        for r in range(16): a(f"v_mov_b32 v{AT_O+r}, 0")
        for j in range(9):
            a(f"s_cmp_gt_i32 s95, {j}")
            a(f"s_cbranch_scc1 L_{tag}_p2_{j}")
            qk(j, 0); soft(j, 0, 0); pv(j, 0, False)
            a(f"L_{tag}_p2_{j}:")
            a.nop(16)
    a(f"v_rcp_f32 v{M}, v{AT_O+8}")
    for r in range(8): a(f"v_mul_f32 v{AT_O+r}, v{AT_O+r}, v{M}")
    for r in range(4): a(f"v_cvt_pk_bf16_f32 v{AT_P+r}, v{AT_O+2*r}, v{AT_O+2*r+1}")
    a(f"s_add_u32 s10, s{S_QB0}, {it}")
    a(f"s_mul_i32 s10, s10, {ACT_RT}")
    a(f"s_add_u32 s11, s{S_HEAD}, 112")
    a("s_lshl_b32 s11, s11, 10")
    a("s_add_u32 s10, s10, s11")
    a(f"s_add_u32 s10, s10, {WS_ACT}")
    a(f"v_lshlrev_b32 v{M+1}, 4, v0")
    a(f"buffer_store_dwordx4 {vr(AT_P,4)}, v{M+1}, {srd(SRD_WS)}, s10 offen sc1")

def attention(a):
    at_setup(a)
    def voff_at(t1):
        a(f"s_and_b32 s10, s{S_RB}, 0xfffffffe")
        a("s_sub_i32 s10, s10, 2")
        a("s_max_i32 s10, s10, 0")
        a(f"s_add_u32 s10, s10, {FL_2}")
        a("s_lshl_b32 s10, s10, 7")
        a(f"v_lshrrev_b32 v{t1}, 4, v0")
        a(f"v_lshlrev_b32 v{t1}, 7, v{t1}")
        a("v_and_b32 v6, 15, v0")
        a("v_lshlrev_b32 v6, 2, v6")
        a(f"v_add_u32 v{t1}, v{t1}, v6")
        a(f"v_add_u32 v{t1}, s10, v{t1}")
    wg_wait(a, S_HW, 2, voff_at, 64, 2, LDS_CNT + 28, 6, 7, "fw_at")
    stamp(a, 2, 6, 7)
    at_loads(a)
    a(f"s_cmp_lt_u32 s{S_RB}, 2")
    a("s_cbranch_scc1 L_at_slow")
    for var in (True, False):
        tag = "f" if var else "s"
        if not var:
            a("L_at_slow:"); a.forget_waits()
        a("s_waitcnt vmcnt(0)")
        stamp(a, 3, 6, 7)
        at_item(a, 0, var, tag + "0")
        at_load_kv(a, 0, 9)
        a("s_waitcnt vmcnt(0)")
        at_item(a, 1, var, tag + "1")
        if var: a("s_branch L_at_done")
    a("L_at_done:")
    stamp(a, 4, 6, 7)
    a("s_waitcnt vmcnt(0)")
    lds_arrive_last(a, LDS_CNT + 4, 6, 7, "at_fl")
    flag_set(a, 4, 6, 7)
    a("L_at_fl_skip:")

FD = 12
F_ACC = 64
F_ACT = 128
F_W = 224
F_AW, F_VW, F_VA, F_T = 240, 242, 243, 244
F_RING = 24 * 1024
S_FL, S_ACTH, S_ACTO, S_WDO, S_WOO = 88, 84, 85, 82, 83

def f_ksteps():
    L = []
    for u in (0, 2, 4, 1, 3, 5, 6):
        for jj in range(4): L.append((0, 4 * u + jj))
    for hd in range(8): L.append((1, hd))
    return L

def f_setup(a):
    KQ = S_WAVE
    a(f"s_mul_i32 s{S_FL}, s{KQ}, {F_RING}")
    a(f"s_add_u32 s{S_FL}, s{S_FL}, {BLK}")
    a(f"s_mul_i32 s89, s{S_FRT}, {2*ACT_RT}")
    a(f"s_add_u32 s89, s89, {WS_ACT}")
    a(f"s_mul_i32 s10, s{KQ}, {28*1024}")
    a(f"s_add_u32 s{S_ACTH}, s89, s10")
    a(f"s_lshl_b32 s10, s{KQ}, 13")
    a(f"s_add_u32 s{S_ACTO}, s89, s10")
    a(f"s_add_u32 s{S_ACTO}, s{S_ACTO}, {112*1024}")
    a(f"s_lshl_b32 s11, s{S_FCB}, 7")
    a(f"s_mul_i32 s10, s{KQ}, {448*1024}")
    a(f"s_add_u32 s{S_WDO}, s10, s11")
    a(f"s_lshl_b32 s10, s{KQ}, 17")
    a(f"s_add_u32 s{S_WOO}, s10, s11")
    t = F_ACT
    a(f"v_lshrrev_b32 v{t}, 3, v0")
    a(f"v_lshlrev_b32 v{t}, 10, v{t}")
    a(f"v_and_b32 v{t+1}, 7, v0")
    a(f"v_lshrrev_b32 v{t+2}, 4, v0")
    a(f"v_and_b32 v{t+2}, 1, v{t+2}")
    a(f"v_lshlrev_b32 v{t+2}, 2, v{t+2}")
    a(f"v_xor_b32 v{t+1}, v{t+1}, v{t+2}")
    a(f"v_lshlrev_b32 v{t+1}, 4, v{t+1}")
    a(f"v_add_u32 v{F_VW}, v{t}, v{t+1}")
    a(f"v_lshlrev_b32 v{F_VA}, 4, v0")
    a(f"v_lshrrev_b32 v{t}, 4, v0")
    a(f"v_and_b32 v{t+1}, 1, v{t}")
    a(f"v_lshrrev_b32 v{t+2}, 1, v{t}")
    a(f"v_and_b32 v{t+3}, 15, v0")
    a(f"v_lshrrev_b32 v{t+4}, 2, v{t+3}")
    a(f"v_and_b32 v{t+5}, 3, v{t+3}")
    a(f"v_lshlrev_b32 v{t+6}, 2, v{t+2}")
    a(f"v_add_u32 v{t+6}, v{t+6}, v{t+4}")
    a(f"v_lshlrev_b32 v{t+6}, 7, v{t+6}")
    a(f"v_and_b32 v{t+7}, 1, v{t+5}")
    a(f"v_lshlrev_b32 v{t+7}, 3, v{t+7}")
    a(f"v_add_u32 v{t+6}, v{t+6}, v{t+7}")
    a(f"v_lshrrev_b32 v{t+7}, 1, v{t+5}")
    a(f"v_lshlrev_b32 v{t+7}, 4, v{t+7}")
    a(f"v_lshrrev_b32 v{t+8}, 1, v{t+4}")
    a(f"v_lshlrev_b32 v{t+8}, 6, v{t+8}")
    a(f"v_xor_b32 v{t+7}, v{t+7}, v{t+8}")
    a(f"v_lshlrev_b32 v{t+8}, 5, v{t+1}")
    a(f"v_xor_b32 v{t+7}, v{t+7}, v{t+8}")
    a(f"v_add_u32 v{t+6}, v{t+6}, v{t+7}")
    a(f"v_add_u32 v{F_AW}, s{S_FL}, v{t+6}")
    a(f"v_xor_b32 v{F_AW+1}, 64, v{F_AW}")

def f_issue_w(a, n):
    is_o, rel = f_ksteps()[n]; sl = n % FD
    if is_o: a(f"s_add_u32 s10, s{S_WOO}, {rel*16*1024}"); sr = SRD_WO
    else: a(f"s_add_u32 s10, s{S_WDO}, {rel*16*1024}"); sr = SRD_WD
    a(f"s_add_u32 m0, s{S_FL}, {sl*2048}")
    a("s_add_u32 s11, s10, 8192")
    a(f"buffer_load_dwordx4 v{F_VW}, {srd(sr)}, s10 offen lds")
    a(f"s_add_u32 m0, s{S_FL}, {sl*2048+1024}")
    a("s_nop 0")
    a(f"buffer_load_dwordx4 v{F_VW}, {srd(sr)}, s11 offen lds")

def f_issue_a(a, n):
    is_o, rel = f_ksteps()[n]; sl = n % FD
    base = S_ACTO if is_o else S_ACTH
    a(f"s_add_u32 s10, s{base}, {rel*1024}")
    a(f"s_add_u32 s11, s10, {ACT_RT}")
    a(f"buffer_load_dwordx4 {vr(F_ACT+8*sl,4)}, v{F_VA}, {srd(SRD_WS)}, s10 offen sc1")
    a(f"buffer_load_dwordx4 {vr(F_ACT+8*sl+4,4)}, v{F_VA}, {srd(SRD_WS)}, s11 offen sc1")

def f_wreads(a, n):
    sl = n % FD; fs = F_W + 8 * (n & 1)
    for t in range(2):
        a(f"ds_read_b64_tr_b16 {vr(fs+4*t,2)}, v{F_AW+t} offset:{sl*2048}")
        a(f"ds_read_b64_tr_b16 {vr(fs+4*t+2,2)}, v{F_AW+t} offset:{sl*2048+1024}")

def f_mfma(a, n):
    fs = F_W + 8 * (n & 1); sl = n % FD
    for rt in range(2):
        for t in range(2):
            acc = vr(F_ACC + 16 * (2 * rt + t), 16)
            c = acc if n > 0 else "0"
            a(f"v_mfma_f32_32x32x16_bf16 {acc}, {vr(fs+4*t,4)}, {vr(F_ACT+8*sl+4*rt,4)}, {c}")

def final_segment(a, n0, n1, NK=36):
    raise NotImplementedError

def final_gemm(a):
    NK = 36
    seg_of = lambda n: 0 if n < 12 else (1 if n < 28 else 2)
    seg_start = [0, 12, 28, 36]
    q = a.fq
    def wait_for(tags):
        idxs = [i for i, t in enumerate(q) if t in tags]
        if not idxs: return
        last = max(idxs)
        n_after = len(q) - 1 - last
        a(f"s_waitcnt vmcnt({n_after})")
        del q[:last + 1]
    def iw(n): f_issue_w(a, n); q.extend([('w', n)] * 2)
    def ia(n): f_issue_a(a, n); q.extend([('a', n)] * 2)
    a_issued = a.f_a_issued; w_issued = a.f_w_issued
    for seg in range(3):
        s0, s1 = seg_start[seg], seg_start[seg + 1]
        if seg > 0:
            def voff_f(t1, seg=seg):
                if seg == 1:
                    a(f"s_lshr_b32 s10, s{S_FRT}, 1")
                    a(f"s_add_u32 s10, s10, {FL_3}")
                else:
                    a(f"s_lshr_b32 s10, s{S_FRT}, 2")
                    a(f"s_add_u32 s10, s10, {FL_4}")
                a("s_lshl_b32 s10, s10, 7")
                a(f"v_lshlrev_b32 v{t1}, 2, v0")
                a(f"v_add_u32 v{t1}, s10, v{t1}")
            a("s_waitcnt vmcnt(0)")
            wg_wait(a, S_WAVE, 0, voff_f, 16 if seg == 1 else 32, 3 if seg == 1 else 4, LDS_CNT + 32 + 4 * seg, F_T, F_T + 1, f"fw_f{seg}")
            q.clear()
            stamp(a, 8 + seg, F_T, F_T + 1)
            q.extend([('x',)] * NST)
        while a_issued < min(s1, s0 + FD):
            ia(a_issued); a_issued += 1
        wait_for([('w', s0), ('a', s0)])
        f_wreads(a, s0)
        for n in range(s0, s1):
            if n + 1 < s1:
                wait_for([('w', n + 1), ('a', n + 1)])
                f_wreads(a, n + 1)
                a("s_waitcnt lgkmcnt(4)")
            else:
                a("s_waitcnt lgkmcnt(0)")
            f_mfma(a, n)
            if w_issued < NK and w_issued <= n + FD:
                iw(w_issued); w_issued += 1
            if a_issued < s1 and a_issued <= n + FD:
                ia(a_issued); a_issued += 1

RP = 272
def final_reduce(a):
    T = F_T
    a(f"v_and_b32 v{T}, 31, v0")
    a(f"s_movk_i32 s10, {RP}")
    a(f"v_mul_lo_u32 v{T}, v{T}, s10")
    a(f"v_lshrrev_b32 v{T+1}, 5, v0")
    a(f"v_lshlrev_b32 v{T+1}, 4, v{T+1}")
    a(f"v_add_u32 v{T}, v{T}, v{T+1}")
    a(f"v_add_u32 v{T}, s{S_FL}, v{T}")
    a("v_lshrrev_b32 v2, 3, v0")
    a("v_and_b32 v3, 7, v0")
    a("v_lshlrev_b32 v4, 10, v2")
    a("v_lshlrev_b32 v5, 4, v3")
    a("v_add_u32 v4, v4, v5")
    a(f"s_lshl_b32 s10, s{S_FRT}, 16")
    a(f"s_lshl_b32 s11, s{S_WAVE}, 14")
    a("s_add_u32 s10, s10, s11")
    a(f"s_lshl_b32 s11, s{S_FCB}, 7")
    a("s_add_u32 s12, s10, s11")
    a("s_add_u32 s13, s12, 8192")
    a(f"buffer_load_dwordx4 v[8:11], v4, {srd(SRD_X)}, s12 offen")
    a(f"buffer_load_dwordx4 v[12:15], v4, {srd(SRD_X)}, s13 offen")
    for rt in range(2):
        for t in range(2):
            for q in range(4):
                r = F_ACC + 16 * (2 * rt + t) + 4 * q
                a(f"ds_write_b128 v{T}, {vr(r,4)} offset:{rt*32*RP + (t*32+8*q)*4}")
    a("s_waitcnt lgkmcnt(0)")
    a(f"v_mov_b32 v6, {LDS_CNT+12}")
    a("v_mov_b32 v7, 1")
    a("s_mov_b64 exec, 1")
    a("ds_add_u32 v6, v7")
    a("s_mov_b64 exec, -1")
    lds_wait_count(a, LDS_CNT + 12, 4, 6, 7, "fr_bar")
    a(f"s_movk_i32 s10, {RP}")
    a("v_mul_lo_u32 v6, v2, s10")
    a("v_lshlrev_b32 v7, 5, v3")
    a("v_add_u32 v6, v6, v7")
    a(f"s_mul_i32 s10, s{S_WAVE}, {16*RP}")
    a(f"s_add_u32 s10, s10, {BLK}")
    a("v_add_u32 v6, s10, v6")
    a(f"v_add_u32 v7, {2*F_RING}, v6")
    B0 = 128
    for it in range(2):
        for w in range(4):
            base = B0 + 32 * it + 8 * w
            av = 6 + (w >> 1)
            a(f"ds_read_b128 {vr(base,4)}, v{av} offset:{(w&1)*F_RING + it*8*RP}")
            a(f"ds_read_b128 {vr(base+4,4)}, v{av} offset:{(w&1)*F_RING + it*8*RP + 16}")
    a("s_waitcnt vmcnt(0) lgkmcnt(0)")
    for it in range(2):
        b = B0 + 32 * it; xr = 8 + 4 * it
        for e in range(8):
            a(f"v_add_f32 v{b+e}, v{b+e}, v{b+8+e}")
            a(f"v_add_f32 v{b+16+e}, v{b+16+e}, v{b+24+e}")
        for e in range(8): a(f"v_add_f32 v{b+e}, v{b+e}, v{b+16+e}")
        for d in range(4):
            a(f"v_lshlrev_b32 v{b+8}, 16, v{xr+d}")
            a(f"v_and_b32 v{b+9}, 0xffff0000, v{xr+d}")
            a(f"v_add_f32 v{b+2*d}, v{b+2*d}, v{b+8}")
            a(f"v_add_f32 v{b+2*d+1}, v{b+2*d+1}, v{b+9}")
        for d in range(4): a(f"v_cvt_pk_bf16_f32 v{b+16+d}, v{b+2*d}, v{b+2*d+1}")
        a(f"buffer_store_dwordx4 {vr(b+16,4)}, v4, {srd(SRD_OUT)}, s{12+it} offen")

def c_phaseB(a):
    a(f"v_mov_b32 v12, {LDS_CNT+8}")
    a("v_mov_b32 v13, 1")
    a("s_mov_b64 exec, 1")
    a("ds_add_u32 v12, v13")
    a("s_mov_b64 exec, -1")
    lds_wait_count(a, LDS_CNT + 8, 4, 12, 13, "cbar")
    f_setup(a)
    a.fq = []
    a("s_waitcnt vmcnt(0)")
    for n in range(FD):
        f_issue_w(a, n); a.fq.extend([('w', n)] * 2)
    a.f_w_issued = FD
    def voff_f0(t1):
        a(f"s_lshr_b32 s10, s{S_FRT}, 1")
        a(f"s_add_u32 s10, s10, {FL_2}")
        a("s_lshl_b32 s10, s10, 7")
        a(f"v_lshlrev_b32 v{t1}, 2, v0")
        a(f"v_add_u32 v{t1}, s10, v{t1}")
    wg_wait(a, S_WAVE, 0, voff_f0, 16, 2, LDS_CNT + 32, F_T, F_T + 1, "fw_f0")
    for n in range(FD):
        f_issue_a(a, n); a.fq.extend([('a', n)] * 2)
    a.f_a_issued = FD
    epi_pair_unit(a, ACCX, S_U_LATE, 6, FR0)
    a.fq.extend([('s',)] * 4)
    stamp(a, 7, 12, 13)
    a.fq.extend([('x',)] * NST)
    a("s_waitcnt vmcnt(0)")
    a.fq.clear()
    lds_arrive_last(a, LDS_CNT + 16, 12, 13, "c_fl2")
    flag_set(a, 3, 12, 13)
    a("L_c_fl2_skip:")
    a.forget_waits()

def gen():
    a = Asm()
    prologue(a)
    stamp(a, 0, 4, 5)
    touch_t0(a, 48)
    a(f"s_cmp_ge_u32 s{S_WAVE}, 4")
    a("s_cbranch_scc1 L_hwave")
    c_phaseA(a)
    c_phaseB(a)
    final_gemm(a)
    stamp(a, 11, F_T, F_T + 1)
    final_reduce(a)
    a("s_waitcnt vmcnt(0)")
    stamp(a, 12, 4, 5)
    a("s_endpgm")
    a("L_hwave:")
    a.forget_waits()
    a(f"s_sub_u32 s{S_HW}, s{S_WAVE}, 4")
    h_phaseA(a)
    stamp(a, 1, H_T, H_T + 1)
    attention(a)
    a("s_waitcnt vmcnt(0)")
    stamp(a, 5, 6, 7)
    a("L_exit:")
    a("s_endpgm")
    return a

HEADER = open("parallel_sum__sliding_block__glu_gated_glu__prompt.s.ref").read().split("; Override")[0]
def emit(path):
    a = gen()
    if a.errors:
        print("\n".join(a.errors[:30])); print(len(a.errors), "errors")
    out = HEADER + f"; @launch grid=(256,1,1) block=(512,1,1) lds={LDS_TOTAL}\n"
    out += '.amdgcn_target "amdgcn-amd-amdhsa--gfx950"\n.text\n'
    out += f".globl {KNAME}\n.p2align 8\n.type {KNAME},@function\n{KNAME}:\n" + a.text()
    out += (f'.section .rodata,"a"\n.p2align 6\n.amdhsa_kernel {KNAME}\n  .amdhsa_next_free_vgpr 256\n  .amdhsa_next_free_sgpr 102\n'
            f'  .amdhsa_accum_offset 256\n  .amdhsa_group_segment_fixed_size 0\n  .amdhsa_kernarg_size 80\n  .amdhsa_user_sgpr_count 2\n'
            f'  .amdhsa_user_sgpr_kernarg_segment_ptr 1\n  .amdhsa_system_sgpr_workgroup_id_x 1\n.end_amdhsa_kernel\n')
    open(path, "w").write(out)
    print("instrs", a.count, "nops", a.nops_inserted)
if __name__ == "__main__":
    emit(sys.argv[1] if len(sys.argv) > 1 else "f.s")
```

```python
import sys, os, struct
sys.path.insert(0, os.path.dirname(os.path.abspath(__file__)))
from asmlib import Asm

KNAME = "parallel_sum__sliding_block__glu_gated_glu__prompt_kernel"
STAMPS = int(os.environ.get("STAMPS", "0"))
NOFLAG = int(os.environ.get("NOFLAG", "0"))

WS_Q, WS_K, WS_V = 0, 2 << 20, 4 << 20
WS_ACT = 6 << 20
ACT_RT = 144 * 1024
WS_STAT = WS_ACT + 64 * ACT_RT
WS_CSP = WS_STAT + 65536
WS_FLAG = 16 << 20
FL_1R, FL_1C, FL_2, FL_3, FL_4, FL_EPOCH = 0, 16, 32, 48, 64, 80
WS_BYTES = WS_FLAG + 128 * 128
assert WS_CSP + 16 * 10240 <= WS_FLAG
S_TAG = 33
WS_DBG = 32 << 20

S_WAVE = 3
S_XCD, S_J, S_RB, S_CG, S_M, S_I = 4, 5, 6, 7, 8, 9
SRD_X, SRD_WQKV, SRD_WO, SRD_WG, SRD_WU, SRD_WD, SRD_OUT, SRD_DBG, SRD_WS = 36, 40, 44, 48, 52, 56, 60, 64, 68
LOG2E = 1.4426950408889634
QSCALE = 0.25 * LOG2E
def f32bits(x): return struct.unpack('<I', struct.pack('<f', x))[0]
def srd(n): return f"s[{n}:{n+3}]"
def vr(a, n=1): return f"v{a}" if n == 1 else f"v[{a}:{a+n-1}]"

BLK = 16384
NBLK = 9
LDS_MISC = 0
LDS_CS = LDS_MISC
LDS_ST = LDS_MISC + 10240
LDS_RS = LDS_MISC + 12288
LDS_CNT = LDS_MISC + 12800
LDS_TOTAL = 163840
def item_of(kind, s):
    return 2 * s if kind == 'X' else (2 * s + 1 if kind == 'W' else 16 + (s - 8))
def blk_addr(item): return BLK + (item % NBLK) * BLK
NITEMS = 28
def item_free_after(i):
    j = i - NBLK
    if j < 16: return j // 2 + 1
    return (j - 16 + 8) + 1

def stamp(a, idx, t0, t1):
    if not STAMPS: return
    a("s_memrealtime s[98:99]")
    a("s_memtime s[100:101]")
    a("s_waitcnt lgkmcnt(0)")
    a("s_lshl_b32 s99, s2, 3")
    a(f"s_add_u32 s99, s99, s{S_WAVE}")
    a("s_lshl_b32 s99, s99, 8")
    a(f"s_add_u32 s99, s99, {WS_DBG + idx*4}")
    a(f"v_mov_b32 v{t0}, s98")
    a(f"v_mov_b32 v{t1}, s99")
    a(f"buffer_store_dword v{t0}, v{t1}, {srd(SRD_WS)}, 0 offen")
    a(f"v_mov_b32 v{t0}, s100")
    a(f"buffer_store_dword v{t0}, v{t1}, {srd(SRD_WS)}, 0 offen offset:128")
NST = 2 if STAMPS else 0

def prologue(a):
    a("s_cmp_ge_u32 s2, 256")
    a("s_cbranch_scc1 L_exit")
    a("s_load_dwordx16 s[16:31], s[0:1], 0")
    a("s_load_dwordx4 s[32:35], s[0:1], 64")
    a("v_lshrrev_b32 v1, 6, v0")
    a("v_and_b32 v0, 63, v0")
    a(f"v_readfirstlane_b32 s{S_WAVE}, v1")
    a(f"s_and_b32 s{S_XCD}, s2, 7")
    a(f"s_lshr_b32 s{S_J}, s2, 3")
    a(f"s_and_b32 s10, s{S_XCD}, 1")
    a("s_lshl_b32 s10, s10, 3")
    a(f"s_and_b32 s11, s{S_J}, 7")
    a(f"s_add_u32 s{S_RB}, s10, s11")
    a(f"s_lshr_b32 s{S_M}, s{S_XCD}, 1")
    a(f"s_lshr_b32 s{S_I}, s{S_J}, 3")
    a(f"s_lshl_b32 s10, s{S_M}, 2")
    a(f"s_add_u32 s{S_CG}, s10, s{S_I}")
    units(a)
    a(f"s_and_b32 s{S_ROT}, s{S_J}, {int(os.environ.get('ROT', '0'))}")
    a("s_waitcnt lgkmcnt(0)")
    def mk(dst, lo, size):
        a(f"s_mov_b32 s{dst}, s{lo}")
        a(f"s_mov_b32 s{dst+1}, s{lo+1}")
        a(f"s_mov_b32 s{dst+2}, {size}")
        a(f"s_mov_b32 s{dst+3}, 0x20000")
    mk(SRD_X, 16, 2048 * 512 * 2)
    mk(SRD_WQKV, 18, 512 * 1536 * 2)
    mk(SRD_WO, 20, 512 * 512 * 2)
    mk(SRD_WG, 24, 512 * 1792 * 2)
    mk(SRD_WU, 26, 512 * 1792 * 2)
    mk(SRD_WD, 28, 1792 * 512 * 2)
    mk(SRD_OUT, 30, 2048 * 512 * 2)
    mk(SRD_DBG, 32, 256)
    mk(SRD_WS, 34, (64 << 20) if STAMPS else WS_BYTES)
    a(f"s_add_u32 s12, s34, {WS_FLAG + FL_EPOCH*128}")
    a("s_addc_u32 s13, s35, 0")
    a("s_load_dword s32, s[12:13], 0")

S_U_EARLY, S_U_LATE, S_U_Q2 = 90, 91, 92
S_ROT = 95
def units(a):
    a(f"s_mul_i32 s{S_U_EARLY}, s{S_M}, 7")
    a(f"s_lshl_b32 s14, s{S_I}, 1")
    a(f"s_add_u32 s{S_U_EARLY}, s{S_U_EARLY}, s14")
    a(f"s_cmp_eq_u32 s{S_I}, 3")
    a("s_cselect_b32 s14, 0, 1")
    a(f"s_add_u32 s{S_U_LATE}, s{S_U_EARLY}, s14")
    a(f"s_lshl_b32 s10, s{S_M}, 1")
    a(f"s_add_u32 s10, s10, s{S_I}")
    a("s_add_u32 s10, s10, 16")
    a(f"s_lshl_b32 s11, s{S_M}, 2")
    a(f"s_cmp_eq_u32 s{S_I}, 2")
    a("s_cselect_b32 s10, s11, s10")
    a("s_add_u32 s12, s11, 3")
    a(f"s_cmp_eq_u32 s{S_I}, 3")
    a(f"s_cselect_b32 s{S_U_Q2}, s12, s10")

def tile_addr_regs(a, VAP, VAQ, tmp):
    t = tmp
    a(f"v_lshrrev_b32 v{t}, 4, v0")
    a(f"v_and_b32 v{t+1}, 1, v{t}")
    a(f"v_lshrrev_b32 v{t+2}, 1, v{t}")
    a(f"v_and_b32 v{t+3}, 15, v0")
    a(f"v_lshrrev_b32 v{t+4}, 2, v{t+3}")
    a(f"v_and_b32 v{t+5}, 3, v{t+3}")
    a(f"v_lshlrev_b32 v{t+6}, 3, v{t+2}")
    a(f"v_add_u32 v{t+6}, v{t+6}, v{t+4}")
    a(f"v_lshlrev_b32 v{t+6}, 7, v{t+6}")
    a(f"v_and_b32 v{t+7}, 1, v{t+5}")
    a(f"v_lshlrev_b32 v{t+7}, 3, v{t+7}")
    a(f"v_add_u32 v{t+6}, v{t+6}, v{t+7}")
    a(f"v_lshrrev_b32 v{t+7}, 1, v{t+5}")
    a(f"v_lshlrev_b32 v{t+7}, 4, v{t+7}")
    a(f"v_lshrrev_b32 v{t+8}, 1, v{t+4}")
    a(f"v_lshlrev_b32 v{t+8}, 6, v{t+8}")
    a(f"v_xor_b32 v{t+7}, v{t+7}, v{t+8}")
    a(f"v_lshlrev_b32 v{t+8}, 5, v{t+1}")
    a(f"v_xor_b32 v{t+9}, v{t+7}, v{t+8}")
    a(f"v_add_u32 v{VAQ}, v{t+6}, v{t+9}")
    a(f"v_xor_b32 v{VAQ+1}, 64, v{VAQ}")
    a(f"v_lshlrev_b32 v{t+8}, 13, v{t+1}")
    a(f"v_add_u32 v{VAP}, v{VAQ}, v{t+8}")
    for j in range(1, 4): a(f"v_xor_b32 v{VAP+j}, {j*32}, v{VAP}")

def xfrag_addr(a, VAX, wave_sgpr_rows, tmp):
    t = tmp
    a(f"v_and_b32 v{t}, 31, v0")
    a(f"v_lshrrev_b32 v{t+1}, 5, v0")
    a(f"v_lshrrev_b32 v{t+2}, 1, v{t}")
    a(f"v_and_b32 v{t+2}, 7, v{t+2}")
    a(f"v_xor_b32 v{t+2}, v{t+2}, v{t+1}")
    a(f"v_lshlrev_b32 v{t+2}, 4, v{t+2}")
    a(f"v_lshlrev_b32 v{t}, 7, v{t}")
    a(f"v_add_u32 v{t}, v{t}, v{t+2}")
    a(f"v_add_u32 v{VAX}, s{wave_sgpr_rows}, v{t}")
    for kl in range(1, 4): a(f"v_xor_b32 v{VAX+kl}, {kl*32}, v{VAX}")

def pass_tiles(kind, npan=1):
    if kind == 'P': return [('P', j, 0) for j in range(4)]
    return [('Q', t, p * 8192) for p in range(npan) for t in range(2)]

def stage_info(s):
    if s < 8: return item_of('W', s), 4
    if s < 12: return item_of('S', s), 8
    return item_of('S', s), 4

H_VOX0, H_VOX1, H_VO1, H_VO2, H_VO3 = 1, 2, 3, 4, 5
H_AP, H_AQ, H_AX = 6, 10, 12
H_FR = 16
H_XF = 32
H_SUM = 48
H_CS = 56
H_ONE = 60
H_T = 62
S_HW = 80
S_SO1, S_SO2, S_SO3, S_ST1, S_SOX, S_HL = 76, 77, 78, 79, 81, 82
SRD_P1, SRD_P3 = 72, 84

NI = 4
def h_setup(a):
    t = H_T
    a(f"v_lshrrev_b32 v{t}, 3, v0")
    a(f"v_and_b32 v{t+1}, 7, v0")
    a(f"v_lshrrev_b32 v{t+2}, 4, v0")
    a(f"v_xor_b32 v{t+3}, v{t+1}, v{t+2}")
    a(f"v_lshlrev_b32 v{t+3}, 4, v{t+3}")
    a(f"v_lshlrev_b32 v{t+4}, 10, v{t}")
    a(f"v_add_u32 v{H_VOX0}, v{t+4}, v{t+3}")
    a(f"v_xor_b32 v{H_VOX1}, 64, v{H_VOX0}")
    a(f"v_and_b32 v{t+2}, 1, v{t+2}")
    a(f"v_lshlrev_b32 v{t+2}, 2, v{t+2}")
    a(f"v_xor_b32 v{t+1}, v{t+1}, v{t+2}")
    a(f"v_lshlrev_b32 v{t+1}, 4, v{t+1}")
    a("s_movk_i32 s10, 3072")
    a(f"v_mul_lo_u32 v{t+2}, v{t}, s10")
    a(f"v_add_u32 v{H_VO2}, v{t+2}, v{t+1}")
    a("s_movk_i32 s10, 3584")
    a(f"v_mul_lo_u32 v{t+2}, v{t}, s10")
    a(f"s_lshr_b32 s11, s{S_HW}, 1")
    a("s_lshl_b32 s12, s11, 5")
    a(f"v_xor_b32 v{t+3}, s12, v{t+1}")
    a(f"v_add_u32 v{H_VO3}, v{t+2}, v{t+3}")
    a("s_cmp_eq_u32 s11, 0")
    a(f"s_cselect_b32 s{SRD_P3}, s{SRD_WG}, s{SRD_WU}")
    a(f"s_cselect_b32 s{SRD_P3+1}, s{SRD_WG+1}, s{SRD_WU+1}")
    a(f"s_mov_b32 s{SRD_P3+2}, {512*1792*2}")
    a(f"s_mov_b32 s{SRD_P3+3}, 0x20000")
    a(f"s_and_b32 s15, s{S_HW}, 1")
    a("s_mul_i32 s12, s15, 32*3584")
    a(f"s_lshl_b32 s14, s{S_U_LATE}, 7")
    a(f"s_add_u32 s{S_SO3}, s14, s12")
    a(f"s_lshl_b32 s10, s{S_U_Q2}, 7")
    a("s_mul_i32 s12, s15, 32*3072")
    a(f"s_add_u32 s{S_SO2}, s10, s12")
    a(f"s_lshl_b32 s10, s{S_RB}, 17")
    a(f"s_lshl_b32 s12, s{S_HW}, 15")
    a(f"s_add_u32 s{S_SOX}, s10, s12")
    a(f"s_lshl_b32 s{S_HL}, s{S_HW}, 12")
    a(f"s_cmp_eq_u32 s{S_I}, 3")
    a("s_cbranch_scc1 L_h_typeB")
    a(f"v_mov_b32 v{H_VO1}, v{H_VO3}")
    a(f"s_mov_b32 s{SRD_P1}, s{SRD_P3}")
    a(f"s_mov_b32 s{SRD_P1+1}, s{SRD_P3+1}")
    a(f"s_mov_b32 s{SRD_P1+2}, {512*1792*2}")
    a(f"s_lshl_b32 s13, s{S_U_EARLY}, 7")
    a("s_mul_i32 s12, s15, 32*3584")
    a(f"s_add_u32 s{S_SO1}, s13, s12")
    a(f"s_movk_i32 s{S_ST1}, 3584")
    a("s_branch L_h_typeDone")
    a("L_h_typeB:")
    a(f"v_mov_b32 v{H_VO1}, v{H_VO2}")
    a(f"s_mov_b32 s{SRD_P1}, s{SRD_WQKV}")
    a(f"s_mov_b32 s{SRD_P1+1}, s{SRD_WQKV+1}")
    a(f"s_mov_b32 s{SRD_P1+2}, {512*1536*2}")
    a(f"s_lshl_b32 s11, s{S_M}, 2")
    a(f"s_lshr_b32 s10, s{S_HW}, 1")
    a("s_add_u32 s10, s10, s11")
    a("s_add_u32 s10, s10, 1")
    a("s_lshl_b32 s10, s10, 7")
    a("s_mul_i32 s12, s15, 32*3072")
    a(f"s_add_u32 s{S_SO1}, s10, s12")
    a(f"s_movk_i32 s{S_ST1}, 3072")
    a("L_h_typeDone:")
    a(f"s_mov_b32 s{SRD_P1+3}, 0x20000")

def h_item(a, i):
    base = blk_addr(i)
    def chunk(c):
        a(f"s_add_u32 s11, s{S_ROT}, {c}")
        a("s_and_b32 s11, s11, 7")
    if i < 16 and i % 2 == 0:
        s = i // 2
        chunk(s)
        a("s_lshl_b32 s11, s11, 7")
        a(f"s_add_u32 s11, s11, s{S_SOX}")
        for q in range(4):
            a(f"s_add_u32 s10, s11, {q*8*1024}")
            a(f"s_add_u32 m0, s{S_HL}, {base + q*1024}")
            a(f"buffer_load_dwordx4 v{H_VOX1 if q & 1 else H_VOX0}, {srd(SRD_X)}, s10 offen lds")
    elif i < 16:
        s = i // 2
        chunk(s)
        a("s_lshl_b32 s11, s11, 6")
        a(f"s_mul_i32 s11, s11, s{S_ST1}")
        a(f"s_add_u32 s11, s11, s{S_SO1}")
        a(f"s_lshl_b32 s12, s{S_ST1}, 3")
        for q in range(4):
            a(f"s_add_u32 m0, s{S_HL}, {base + q*1024}")
            a(f"buffer_load_dwordx4 v{H_VO1}, {srd(SRD_P1)}, s11 offen lds")
            if q < 3: a("s_add_u32 s11, s11, s12")
    else:
        s = i - 16 + 8
        if s < 12:
            a(f"s_lshr_b32 s11, s{S_HW}, 1")
            a(f"s_add_u32 s11, s11, s{S_ROT}")
            a(f"s_add_u32 s11, s11, {2*(s-8)}")
            a("s_and_b32 s11, s11, 7")
            a("s_mul_i32 s11, s11, 64*3072")
            a(f"s_add_u32 s11, s11, s{S_SO2}")
            v, sr, st = H_VO2, SRD_WQKV, 3072
        else:
            chunk(s - 12)
            a("s_mul_i32 s11, s11, 64*3584")
            a(f"s_add_u32 s11, s11, s{S_SO3}")
            v, sr, st = H_VO3, SRD_P3, 3584
        for q in range(4):
            a(f"s_add_u32 s10, s11, {8*q*st}")
            a(f"s_add_u32 m0, s{S_HL}, {base + q*1024}")
            a(f"buffer_load_dwordx4 v{v}, {srd(sr)}, s10 offen lds")

class AG:
    def __init__(self, regs): self.regs = regs; self.bias = 0
    def off(self, a, base):
        w = (base // (3 * BLK)) * 3 * BLK
        if w != self.bias:
            d = w - self.bias
            for r in self.regs:
                if d > 0: a(f"v_add_u32 v{r}, {d}, v{r}")
                else: a(f"v_subrev_u32 v{r}, {-d}, v{r}")
            self.bias = w
        return base - w

H_EP = 18
H_PL = 16
H_G = 20
NBAR = 15
WS_CS = WS_CSP
def h_loader(a):
    issued = []
    def outstanding(): return sum(n for t, n in issued)
    def wait_tags(need):
        idx = [k for k, (t, n) in enumerate(issued) if t in need]
        if not idx: return
        last = max(idx)
        a(f"s_waitcnt vmcnt({sum(n for t, n in issued[last+1:])})")
        del issued[:last + 1]
    def issue(i):
        while outstanding() + NI > 60:
            wait_tags([issued[0][0]])
        h_item(a, i); issued.append((i, NI))
    h_setup(a)
    nextitem = 0
    issued.append(('touch', 2))
    while nextitem < 2: issue(nextitem); nextitem += 1
    wait_tags(['touch'])
    epoch_ready(a)
    if os.environ.get("DELAYH"):
        a(f"s_mov_b32 s15, {os.environ['DELAYH']}")
        a("L_dly:")
        a("s_sleep 8")
        a("s_sub_u32 s15, s15, 1")
        a("s_cmp_lg_u32 s15, 0")
        a("s_cbranch_scc1 L_dly")
    while nextitem < int(os.environ.get("INIT_ITEMS", "4")): issue(nextitem); nextitem += 1
    a(f"v_lshlrev_b32 v{H_T}, 2, v0")
    a(f"v_mov_b32 v{H_T+1}, 0")
    a(f"ds_write_b32 v{H_T}, v{H_T+1} offset:{LDS_CNT}")
    a(f"v_and_b32 v{H_T}, 15, v0")
    a(f"v_lshlrev_b32 v{H_T}, 2, v{H_T}")
    a(f"s_lshl_b32 s10, s{S_RB}, 7")
    a(f"s_add_u32 s10, s10, {FL_1R*128}")
    a(f"v_add_u32 v{H_T+1}, s10, v{H_T}")
    a(f"s_lshl_b32 s10, s{S_CG}, 7")
    a(f"s_add_u32 s10, s10, {FL_1C*128}")
    a(f"v_add_u32 v{H_T+2}, s10, v{H_T}")
    a("v_cmp_gt_u32 vcc, 16, v0")
    a(f"v_cndmask_b32 v{H_PL+1}, v{H_T+2}, v{H_T+1}, vcc")
    for s in range(0, NBAR):
        if s < 8: need = [item_of('X', s), item_of('W', s)]
        elif s < 14: need = [item_of('S', s)]
        else: need = [NITEMS - 1]
        wait_tags(need)
        if (STAMPS == 2 and s < 15) or (STAMPS == 1 and s in (0, 4, 8, 12)):
            stamp(a, 8 + s, H_T, H_T + 1); issued.append(('st', 2))
        if s in (0, 12): a("s_waitcnt lgkmcnt(0)")
        a("s_barrier")
        if s == 7:
            a(f"s_mov_b32 s14, {WS_FLAG}")
            a(f"buffer_load_dword v{H_PL}, v{H_PL+1}, {srd(SRD_WS)}, s14 offen sc1"); issued.append(('poll', 1))
        if s == 9:
            wait_tags(['poll'])
            a(f"s_add_u32 s13, s{S_TAG}, 1")
            a(f"v_cmp_ne_u32 vcc, s13, v{H_PL}")
            a("s_and_b64 vcc, vcc, 0xffffffff")
            a("s_cmp_eq_u64 vcc, 0")
            a("s_cbranch_scc1 L_h_pok")
            flag_wait(a, 32, 1, H_PL, H_PL + 1, "fw_prep")
            a("L_h_pok:")
            a(f"v_and_b32 v{H_T}, 31, v0")
            a(f"s_lshl_b32 s10, s{S_RB}, 7")
            a(f"s_lshl_b32 s11, s{S_HW}, 5")
            a("s_add_u32 s10, s10, s11")
            a(f"v_add_u32 v{H_T}, s10, v{H_T}")
            a(f"v_lshlrev_b32 v{H_T}, 4, v{H_T}")
            a(f"s_mov_b32 s10, {WS_STAT}")
            a(f"buffer_load_dwordx4 {vr(H_G,4)}, v{H_T}, {srd(SRD_WS)}, s10 offen sc1"); issued.append(('g', 1))
            a(f"v_lshlrev_b32 v{H_T+1}, 4, v0")
            a(f"s_mul_i32 s10, s{S_CG}, 10240")
            a(f"s_add_u32 s10, s10, {WS_CSP}")
            a(f"s_lshl_b32 s11, s{S_HW}, 10")
            a("s_add_u32 s10, s10, s11")
            for q in range(3):
                if q == 2:
                    a(f"s_cmp_lt_u32 s{S_HW}, 2")
                    a("s_cselect_b32 s11, 4096, 0")
                    a("s_add_u32 s10, s10, s11")
                elif q == 1:
                    a("s_add_u32 s10, s10, 4096")
                a(f"buffer_load_dwordx4 {vr(H_G+4+4*q,4)}, v{H_T+1}, {srd(SRD_WS)}, s10 offen sc1"); issued.append(('g', 1))
        cap = 2 * s + int(os.environ.get("LEAD_ITEMS", "8"))
        while nextitem < NITEMS and nextitem < cap and (nextitem < NBLK or item_free_after(nextitem) <= s):
            issue(nextitem); nextitem += 1
        if s == 11:
            wait_tags(['g'])
            a(f"v_and_b32 v{H_T}, 31, v0")
            a(f"s_lshl_b32 s10, s{S_HW}, 5")
            a(f"v_add_u32 v{H_T}, s10, v{H_T}")
            a(f"v_lshlrev_b32 v{H_T+1}, 4, v{H_T}")
            a(f"v_lshlrev_b32 v{H_T}, 2, v{H_T}")
            a("s_mov_b64 exec, 0xffffffff")
            a(f"ds_write_b128 v{H_T+1}, {vr(H_G,4)} offset:{LDS_ST}")
            a(f"ds_write_b32 v{H_T}, v{H_G+1} offset:{LDS_RS}")
            a("s_mov_b64 exec, -1")
            a(f"v_lshlrev_b32 v{H_T}, 4, v0")
            a(f"s_lshl_b32 s10, s{S_HW}, 10")
            a(f"v_add_u32 v{H_T}, s10, v{H_T}")
            a(f"ds_write_b128 v{H_T}, {vr(H_G+4,4)} offset:{LDS_CS}")
            a(f"ds_write_b128 v{H_T}, {vr(H_G+8,4)} offset:{LDS_CS+4096}")
            a(f"s_cmp_lt_u32 s{S_HW}, 2")
            a("s_cbranch_scc0 L_h_nog3")
            a(f"ds_write_b128 v{H_T}, {vr(H_G+12,4)} offset:{LDS_CS+8192}")
            a("L_h_nog3:")

def h_phaseA(a):
    h_loader(a)
    a.forget_waits()

VX = 128
ACCX, ACCY = 64, 32
V_AP, V_AQ, V_AX = 1, 5, 8
V_ST = 7
V_T = 12
FR0, FR1 = 16, 32

def c_setup(a):
    tile_addr_regs(a, V_AP, V_AQ, 16)
    a(f"s_lshl_b32 s10, s{S_WAVE}, 12")
    xfrag_addr(a, V_AX, 10, 16)
    a(f"v_lshlrev_b32 v{V_ST}, 4, v0")
    a.c_agw = AG(list(range(V_AP, V_AP + 4)) + [V_AQ, V_AQ + 1])
    a.c_agx = AG(list(range(V_AX, V_AX + 4)))

S_FRT, S_FCB = 86, 87
def fin_ids(a):
    a(f"s_lshl_b32 s12, s{S_XCD}, 2")
    a(f"s_and_b32 s13, s{S_J}, 3")
    a(f"s_add_u32 s{S_FRT}, s12, s13")
    a(f"s_lshr_b32 s{S_FCB}, s{S_J}, 2")

def xlane_reduce(a, A, n, T):
    for e in range(4): a(f"v_permlane32_swap_b32 v{A+e}, v{A+e+4}")
    for e in range(4): a(f"v_add_f32 v{A+e}, v{A+e}, v{A+e+4}")
    for e in range(2): a(f"v_permlane16_swap_b32 v{A+e}, v{A+e+2}")
    for e in range(2): a(f"v_add_f32 v{A+e}, v{A+e}, v{A+e+2}")

def c_prep(a):
    L = 128
    a(f"s_cmp_eq_u32 s{S_WAVE}, 0")
    a("s_cbranch_scc0 L_prep_cs")
    a("v_lshlrev_b32 v2, 4, v0")
    a(f"s_lshl_b32 s10, s{S_RB}, 17")
    a(f"s_lshl_b32 s11, s{S_CG}, 13")
    a("s_add_u32 s10, s10, s11")
    for r in range(8):
        a(f"s_add_u32 s11, s10, {r*1024}")
        a(f"buffer_load_dwordx4 {vr(L+4*r,4)}, v2, {srd(SRD_X)}, s11 offen")
    a("v_mov_b32 v3, 0x3f803f80")
    S, Q = 16, 24
    for r in range(16): a(f"v_mov_b32 v{16+r}, 0")
    for r in range(8):
        a(f"s_waitcnt vmcnt({7-r})")
        for d in range(4):
            a(f"v_dot2_f32_bf16 v{S+r}, v{L+4*r+d}, v3, v{S+r}")
            a(f"v_dot2_f32_bf16 v{Q+r}, v{L+4*r+d}, v{L+4*r+d}, v{Q+r}")
    xlane_reduce(a, S, 8, 0); xlane_reduce(a, Q, 8, 0)
    for ror in (8, 4, 2, 1):
        for R in (S, S + 1, Q, Q + 1):
            a(f"v_add_f32_dpp v{R}, v{R}, v{R} row_ror:{ror} row_mask:0xf bank_mask:0xf")
    a("v_lshrrev_b32 v4, 4, v0")
    a("v_and_b32 v5, 1, v4")
    a("v_lshlrev_b32 v5, 1, v5")
    a("v_lshrrev_b32 v4, 1, v4")
    a("v_lshlrev_b32 v4, 2, v4")
    a("v_add_u32 v4, v4, v5")
    a(f"s_lshl_b32 s10, s{S_RB}, 7")
    a(f"s_lshl_b32 s11, s{S_CG}, 3")
    a("s_add_u32 s10, s10, s11")
    a("v_add_u32 v4, s10, v4")
    a("v_lshlrev_b32 v4, 4, v4")
    a("v_and_b32 v5, 15, v0")
    a("v_cmp_eq_u32 vcc, 0, v5")
    a("s_mov_b64 s[12:13], vcc")
    for e in range(2):
        m, q = S + e, Q + e
        O = 32 + 4 * e
        a(f"v_mul_f32 v{m}, {f32bits(1/512.0):#x}, v{m}")
        a(f"v_mul_f32 v{q}, {f32bits(1/512.0):#x}, v{q}")
        a(f"v_mul_f32 v{O}, v{m}, v{m}")
        a(f"v_sub_f32 v{q}, v{q}, v{O}")
        a(f"v_max_f32 v{q}, 0, v{q}")
        a(f"v_cvt_pk_bf16_f32 v{m}, v{m}, v{m}")
        a(f"v_cvt_pk_bf16_f32 v{q}, v{q}, v{q}")
        a(f"v_lshlrev_b32 v{q}, 16, v{q}")
        a(f"v_add_f32 v{q}, {f32bits(1e-5):#x}, v{q}")
        a(f"v_cvt_pk_bf16_f32 v{q}, v{q}, v{q}")
        a(f"v_lshlrev_b32 v{q}, 16, v{q}")
        a(f"v_sqrt_f32 v{q}, v{q}")
        a(f"v_cvt_pk_bf16_f32 v{q}, v{q}, v{q}")
        a(f"v_lshlrev_b32 v{O+2}, 16, v{q}")
        a(f"v_rcp_f32 v{O+1}, v{O+2}")
        a(f"v_xor_b32 v{O}, 0x80008000, v{m}")
        a(f"v_mov_b32 v{O+3}, 0")
    a(f"s_mov_b32 s10, {WS_STAT}")
    a("s_mov_b64 exec, s[12:13]")
    a(f"buffer_store_dwordx4 v[32:35], v4, {srd(SRD_WS)}, s10 offen sc1")
    a(f"buffer_store_dwordx4 v[36:39], v4, {srd(SRD_WS)}, s10 offen offset:16 sc1")
    a("s_mov_b64 exec, -1")
    a("s_branch L_prep_done")
    a("L_prep_cs:")
    a.forget_waits()
    a(f"s_lshr_b32 s11, s{S_RB}, 3")
    a("s_mul_i32 s11, s11, 3")
    a(f"s_add_u32 s11, s11, s{S_WAVE}")
    a("s_sub_u32 s11, s11, 1")
    a("s_cmp_ge_u32 s11, 5")
    a("s_cbranch_scc1 L_prep_done")
    a(f"s_and_b32 s12, s{S_RB}, 7")
    T = 76
    a(f"s_lshl_b32 s{T}, s{S_M}, 2")
    a(f"s_add_u32 s{T}, s{T}, 1")
    a(f"s_add_u32 s{T}, s{T}, s11")
    a(f"s_lshl_b32 s{T+1}, s11, 1")
    a(f"s_cmp_eq_u32 s{S_I}, 3")
    a(f"s_cselect_b32 s{T+2}, 2, s11")
    a(f"s_cselect_b32 s{T+3}, s{T}, s{S_U_EARLY}")
    a(f"s_cselect_b32 s{T+4}, s{T+1}, 0")
    a("s_cmp_eq_u32 s11, 2")
    a(f"s_cselect_b32 s{T+2}, 2, s{T+2}")
    a(f"s_cselect_b32 s{T+3}, s{S_U_Q2}, s{T+3}")
    a(f"s_cselect_b32 s{T+4}, 4, s{T+4}")
    a(f"s_sub_u32 s{T}, s11, 3")
    a("s_cmp_ge_u32 s11, 3")
    a(f"s_cselect_b32 s{T+2}, s{T}, s{T+2}")
    a(f"s_cselect_b32 s{T+3}, s{S_U_LATE}, s{T+3}")
    a(f"s_cselect_b32 s{T+4}, 6, s{T+4}")
    a(f"s_cmp_eq_u32 s{T+2}, 0")
    a(f"s_cselect_b32 s72, s{SRD_WG}, s{SRD_WU}")
    a(f"s_cselect_b32 s73, s{SRD_WG+1}, s{SRD_WU+1}")
    a(f"s_mov_b32 s74, {512*1792*2}")
    a(f"s_movk_i32 s{T+5}, 3584")
    a(f"s_cmp_eq_u32 s{T+2}, 2")
    a(f"s_cselect_b32 s72, s{SRD_WQKV}, s72")
    a(f"s_cselect_b32 s73, s{SRD_WQKV+1}, s73")
    a(f"s_cselect_b32 s74, {512*1536*2}, s74")
    a("s_mov_b32 s75, 0x20000")
    a(f"s_cselect_b32 s{T+5}, 3072, s{T+5}")
    a(f"s_lshl_b32 s14, s{T+3}, 7")
    a(f"s_lshl_b32 s13, s12, 6")
    a(f"s_mul_i32 s13, s13, s{T+5}")
    a("s_add_u32 s14, s14, s13")
    a("v_lshrrev_b32 v2, 3, v0")
    a("v_and_b32 v3, 7, v0")
    a(f"v_mul_lo_u32 v6, v2, s{T+5}")
    a("v_lshlrev_b32 v7, 4, v3")
    a("v_add_u32 v6, v6, v7")
    a(f"s_lshl_b32 s13, s{T+5}, 3")
    for q in range(8):
        a(f"buffer_load_dwordx4 {vr(L+4*q,4)}, v6, s[72:75], s14 offen")
        if q < 7: a("s_add_u32 s14, s14, s13")
    a("v_mov_b32 v4, 0x00003f80")
    a("v_mov_b32 v5, 0x3f800000")
    A = 16
    for e in range(8): a(f"v_mov_b32 v{A+e}, 0")
    for q in range(8):
        a(f"s_waitcnt vmcnt({7-q})")
        for d in range(4):
            a(f"v_dot2_f32_bf16 v{A+2*d}, v{L+4*q+d}, v4, v{A+2*d}")
            a(f"v_dot2_f32_bf16 v{A+2*d+1}, v{L+4*q+d}, v5, v{A+2*d+1}")
    xlane_reduce(a, A, 8, 0)
    for e in range(2): a(f"v_add_f32_dpp v{A+e}, v{A+e}, v{A+e} row_ror:8 row_mask:0xf bank_mask:0xf")
    for e in range(2):
        a(f"v_cvt_pk_bf16_f32 v{A+2+e}, v{A+e}, v{A+e}")
        a(f"v_lshlrev_b32 v{A+2+e}, 16, v{A+2+e}")
        a(f"v_sub_f32 v{A+2+e}, v{A+e}, v{A+2+e}")
        a(f"v_cvt_pk_bf16_f32 v{A+e}, v{A+e}, v{A+2+e}")
    a("v_lshrrev_b32 v8, 4, v0")
    a("v_and_b32 v9, 1, v8")
    a("v_lshlrev_b32 v9, 1, v9")
    a("v_lshrrev_b32 v8, 1, v8")
    a("v_lshlrev_b32 v8, 2, v8")
    a("v_add_u32 v8, v8, v9")
    a("v_lshlrev_b32 v9, 3, v3")
    a("v_add_u32 v8, v8, v9")
    a("v_lshrrev_b32 v9, 4, v8")
    a("v_lshlrev_b32 v9, 5, v9")
    a("v_and_b32 v10, 15, v8")
    a("v_add_u32 v9, v9, v10")
    a(f"s_lshl_b32 s13, s{T+2}, 4")
    a("v_add_u32 v9, s13, v9")
    a(f"s_cmp_eq_u32 s{T+2}, 2")
    a("s_cselect_b64 vcc, -1, 0")
    a("v_cndmask_b32 v8, v9, v8, vcc")
    a("v_lshrrev_b32 v9, 5, v8")
    a(f"v_add_u32 v9, s{T+4}, v9")
    a("v_lshlrev_b32 v9, 10, v9")
    a("v_and_b32 v8, 31, v8")
    a("v_lshlrev_b32 v8, 4, v8")
    a("v_add_u32 v8, v8, v9")
    a("s_lshr_b32 s13, s12, 2")
    a("s_lshl_b32 s13, s13, 9")
    a("s_and_b32 s14, s12, 3")
    a("s_lshl_b32 s14, s14, 2")
    a("s_add_u32 s13, s13, s14")
    a(f"s_mul_i32 s14, s{S_CG}, 10240")
    a("s_add_u32 s14, s14, s13")
    a(f"s_add_u32 s14, s14, {WS_CSP}")
    a("v_and_b32 v9, 8, v0")
    a("v_cmp_eq_u32 vcc, 0, v9")
    a("s_mov_b64 s[12:13], vcc")
    a("s_mov_b64 exec, s[12:13]")
    a(f"buffer_store_dword v{A}, v8, {srd(SRD_WS)}, s14 offen sc1")
    a(f"buffer_store_dword v{A+1}, v8, {srd(SRD_WS)}, s14 offen offset:16 sc1")
    a("s_mov_b64 exec, -1")
    a("L_prep_done:")
    a.forget_waits()
    a.nop(8)

def epoch_ready(a):
    a("s_waitcnt lgkmcnt(0)")
    a(f"s_add_u32 s{S_TAG}, s32, 1")
    a(f"s_lshl_b32 s{S_TAG}, s{S_TAG}, 3")

def touch_t0(a, dst):
    a(f"s_cmp_ge_u32 s{S_WAVE}, 4")
    a("s_cbranch_scc1 L_tt_w")
    a("v_lshrrev_b32 v2, 3, v0")
    a("v_lshlrev_b32 v2, 10, v2")
    a("v_and_b32 v3, 7, v0")
    a("v_lshlrev_b32 v3, 7, v3")
    a("v_add_u32 v2, v2, v3")
    a(f"s_lshl_b32 s10, s{S_RB}, 17")
    a(f"s_lshl_b32 s11, s{S_I}, 15")
    a("s_add_u32 s10, s10, s11")
    a(f"s_lshl_b32 s11, s{S_WAVE}, 13")
    a("s_add_u32 s10, s10, s11")
    a(f"buffer_load_dword v{dst}, v2, {srd(SRD_X)}, s10 offen")
    a("s_branch L_tt_done")
    a("L_tt_w:")
    a(f"s_and_b32 s10, s{S_J}, 7")
    a("s_lshl_b32 s11, s10, 6")
    a("v_add_u32 v2, s11, v0")
    a("s_movk_i32 s12, 3584")
    a("v_mul_lo_u32 v3, v2, s12")
    a("s_movk_i32 s12, 3072")
    a("v_mul_lo_u32 v2, v2, s12")
    a(f"s_cmp_ge_u32 s{S_WAVE}, 6")
    a("s_cbranch_scc1 L_tt_w3")
    a(f"s_cmp_eq_u32 s{S_I}, 3")
    a("s_cbranch_scc1 L_tt_B")
    a(f"s_lshl_b32 s13, s{S_U_EARLY}, 7")
    a(f"s_cmp_eq_u32 s{S_WAVE}, 4")
    a("s_cbranch_scc0 L_tt_up")
    a(f"buffer_load_dword v{dst}, v3, {srd(SRD_WG)}, s13 offen")
    a("s_branch L_tt_done")
    a("L_tt_up:")
    a(f"buffer_load_dword v{dst}, v3, {srd(SRD_WU)}, s13 offen")
    a("s_branch L_tt_done")
    a("L_tt_B:")
    a(f"s_lshl_b32 s13, s{S_M}, 2")
    a(f"s_add_u32 s13, s13, s{S_WAVE}")
    a("s_sub_u32 s13, s13, 3")
    a("s_lshl_b32 s13, s13, 7")
    a(f"buffer_load_dword v{dst}, v2, {srd(SRD_WQKV)}, s13 offen")
    a("s_branch L_tt_done")
    a("s_branch L_tt_done")
    a("L_tt_w3:")
    a("s_mul_i32 s10, s2, 72")
    a(f"s_sub_u32 s11, s{S_WAVE}, 6")
    a("s_mul_i32 s11, s11, 36")
    a("s_add_u32 s10, s10, s11")
    a("s_lshl_b32 s10, s10, 7")
    a("v_lshlrev_b32 v2, 7, v0")
    a("v_add_u32 v2, s10, v2")
    a(f"v_subrev_u32 v3, {1792*1024}, v2")
    a("s_mov_b32 exec_hi, 0xf")
    a(f"buffer_load_dword v{dst}, v2, {srd(SRD_WD)}, 0 offen")
    a(f"buffer_load_dword v{dst}, v3, {srd(SRD_WO)}, 0 offen")
    a("s_mov_b64 exec, -1")
    a("L_tt_done:")

def c_touch_w3(a, q, dst):
    tag = f"tw3_{q}"
    a(f"s_cmp_eq_u32 s{S_WAVE}, 0")
    a(f"s_cbranch_scc1 L_{tag}_skip")
    a(f"s_and_b32 s10, s{S_J}, 3")
    a("s_mul_i32 s11, s10, 576")
    a(f"s_sub_u32 s12, s{S_WAVE}, 1")
    a("s_mul_i32 s12, s12, 192")
    a("s_add_u32 s11, s11, s12")
    a(f"s_add_u32 s11, s11, {64*q}")
    a(f"s_lshl_b32 s13, s{S_FCB}, 7")
    a(f"v_lshlrev_b32 v{V_T}, 10, v0")
    a("s_cmp_lt_u32 s11, 1792")
    a(f"s_cbranch_scc0 L_{tag}_wo")
    a("s_lshl_b32 s11, s11, 10")
    a("s_add_u32 s13, s13, s11")
    a(f"buffer_load_dword v{dst}, v{V_T}, {srd(SRD_WD)}, s13 offen")
    a(f"s_branch L_{tag}_skip")
    a(f"L_{tag}_wo:")
    a("s_sub_u32 s11, s11, 1792")
    a("s_lshl_b32 s11, s11, 10")
    a("s_add_u32 s13, s13, s11")
    a(f"buffer_load_dword v{dst}, v{V_T}, {srd(SRD_WO)}, s13 offen")
    a(f"L_{tag}_skip:")

class Pass:
    def __init__(self, a, tiles, swap, acc0, first_stage, nstages, kps, frsets, loadx=False):
        self.a, self.tiles, self.swap, self.acc0 = a, tiles, swap, acc0
        self.fs, self.ns, self.kps, self.frsets, self.loadx = first_stage, nstages, kps, frsets, loadx
        self.nks = nstages * kps
    def reads(self, ks, tl, withx):
        a = self.a
        if os.environ.get("NOC"): return 0
        s = self.fs + ks // self.kps; kl = ks % self.kps
        it, _ = stage_info(s)
        base = a.c_agw.off(a, blk_addr(it)) + kl * 2048
        fs = self.frsets[ks & 1]
        n = 0
        if withx and self.loadx:
            xb = a.c_agx.off(a, blk_addr(item_of('X', s)))
            a(f"ds_read_b128 {vr(VX+4*ks,4)}, v{V_AX+kl} offset:{xb}"); n += 1
        for t in tl:
            k, idx, imm = self.tiles[t]
            av = (V_AP if k == 'P' else V_AQ) + idx
            a(f"ds_read_b64_tr_b16 {vr(fs+4*t,2)}, v{av} offset:{base+imm}")
            a(f"ds_read_b64_tr_b16 {vr(fs+4*t+2,2)}, v{av} offset:{base+imm+512}")
            n += 2
        return n
    def entry(self):
        self.a("s_barrier")
        self.reads(0, range(len(self.tiles)), True)
    def body(self, first_reads_done_waited=False, pre_barrier=None, post_barrier=None):
        a = self.a; T = len(self.tiles); NB_LAST = 14
        for ks in range(self.nks):
            nxt = ks + 1
            has_next = nxt < self.nks
            snext = self.fs + nxt // self.kps
            boundary = has_next and (nxt % self.kps == 0) and snext <= NB_LAST
            fs = self.frsets[ks & 1]
            if boundary:
                a("s_waitcnt lgkmcnt(0)")
                if pre_barrier: pre_barrier(snext)
                a("s_barrier")
                if STAMPS == 2: stamp(a, 13 + snext, 12, 13)
                if post_barrier: post_barrier(snext)
            half = (T + 1) // 2
            issued_next = 0
            for t in range(T):
                if not boundary and not (ks == 0 and first_reads_done_waited):
                    n_after = 2 * (T - 1 - t) + issued_next
                    a(f"s_waitcnt lgkmcnt({min(n_after, 15)})")
                acc = vr(self.acc0 + 16 * t, 16)
                c = acc if ks > 0 else "0"
                x = vr(VX + 4 * ks, 4); w = vr(fs + 4 * t, 4)
                if os.environ.get("NOC") or os.environ.get("NOMFMA"): pass
                elif self.swap: a(f"v_mfma_f32_32x32x16_bf16 {acc}, {x}, {w}, {c}")
                else: a(f"v_mfma_f32_32x32x16_bf16 {acc}, {w}, {x}, {c}")
                if has_next:
                    if t == 0: issued_next += self.reads(nxt, range(0, half), True)
                    elif t == 1: issued_next += self.reads(nxt, range(half, T), False)

def epi_common(a, E, tile0, ntiles):
    a(f"v_and_b32 v{V_T}, 31, v0")
    a(f"s_lshl_b32 s10, s{S_WAVE}, 5")
    a(f"v_add_u32 v{V_T+1}, s10, v{V_T}")
    a(f"v_lshlrev_b32 v{V_T+1}, 4, v{V_T+1}")
    a(f"ds_read_b128 {vr(E,4)}, v{V_T+1} offset:{LDS_ST}")
    a(f"v_lshlrev_b32 v{V_T}, 4, v0")
    a._cs_tile0 = tile0
    for t in range(min(2, ntiles)):
        a(f"ds_read_b128 {vr(E+8+4*(t&1),4)}, v{V_T} offset:{LDS_CS + (tile0+t)*1024}")
    a._cs_n = ntiles
    a(f"s_waitcnt lgkmcnt({min(2, ntiles)})")
    for r in range(4): a(f"v_mov_b32 v{E+4+r}, v{E}")

def epi_meancorr(a, E, t, acc, swap):
    nt = a._cs_n
    a(f"s_waitcnt lgkmcnt({1 if t + 1 < nt else 0})")
    A = vr(acc, 16); F = vr(E + 8 + 4 * (t & 1), 4)
    if swap: a(f"v_mfma_f32_32x32x16_bf16 {A}, {vr(E+4,4)}, {F}, {A}")
    else: a(f"v_mfma_f32_32x32x16_bf16 {A}, {F}, {vr(E+4,4)}, {A}")
    if t + 2 < nt:
        a(f"ds_read_b128 {F}, v{V_T} offset:{LDS_CS + (a._cs_tile0+t+2)*1024}")

def epi_pair_unit(a, acc, unit_sgpr, tile0, E):
    epi_common(a, E, tile0, 4)
    for t in range(4): epi_meancorr(a, E, t, acc + 16 * t, False)
    a(f"v_mul_f32 v{E+3}, {f32bits(-LOG2E):#x}, v{E+1}")
    a(f"s_lshl_b32 s13, s{S_RB}, 2")
    a(f"s_add_u32 s13, s13, s{S_WAVE}")
    a(f"s_mul_i32 s13, s13, {ACT_RT}")
    a(f"s_lshl_b32 s14, s{unit_sgpr}, 12")
    a("s_add_u32 s13, s13, s14")
    a(f"s_add_u32 s13, s13, {WS_ACT}")
    for j in range(4):
        A = acc + 16 * j
        for r in range(8): a(f"v_mul_f32 v{A+r}, v{A+r}, v{E+3}")
        for r in range(8): a(f"v_exp_f32 v{A+r}, v{A+r}")
        for r in range(8): a(f"v_fma_f32 v{A+r}, v{A+r}, v{E+2}, v{E+2}")
        for r in range(8): a(f"v_rcp_f32 v{A+r}, v{A+r}")
        for r in range(8): a(f"v_mul_f32 v{A+r}, v{A+r}, v{A+8+r}")
        for r in range(4): a(f"v_cvt_pk_bf16_f32 v{A+8+r}, v{A+2*r}, v{A+2*r+1}")
        a(f"buffer_store_dwordx4 {vr(A+8,4)}, v{V_ST}, {srd(SRD_WS)}, s13 offen offset:{j*1024} sc1")

def qk_lane_off(a, dst):
    a(f"v_and_b32 v{dst}, 31, v0")
    a(f"v_lshlrev_b32 v{dst}, 5, v{dst}")
    a(f"v_lshrrev_b32 v{V_T}, 5, v0")
    a(f"v_lshlrev_b32 v{V_T}, 4, v{V_T}")
    a(f"v_add_u32 v{dst}, v{dst}, v{V_T}")

def epi_n_units(a, acc, unit_sgprs, tile0, E):
    nt = 2 * len(unit_sgprs)
    epi_common(a, E, tile0, nt)
    for t in range(nt): epi_meancorr(a, E, t, acc + 16 * t, False)
    qk_lane_off(a, V_T + 2)
    for ui, us in enumerate(unit_sgprs):
        a(f"s_mov_b32 s12, {f32bits(QSCALE):#x}")
        a(f"s_cmp_lt_u32 s{us}, 8")
        a("s_cselect_b32 s12, s12, 1.0")
        a(f"v_mul_f32 v{E+3}, s12, v{E+1}")
        a(f"s_lshl_b32 s13, s{us}, 18")
        a(f"s_lshl_b32 s14, s{S_RB}, 12")
        a("s_add_u32 s13, s13, s14")
        a(f"s_lshl_b32 s14, s{S_WAVE}, 10")
        a("s_add_u32 s13, s13, s14")
        for t in range(2):
            A = acc + 16 * (2 * ui + t)
            for r in range(16): a(f"v_mul_f32 v{A+r}, v{A+r}, v{E+3}")
            for r in range(8): a(f"v_cvt_pk_bf16_f32 v{A+r}, v{A+2*r}, v{A+2*r+1}")
            a(f"buffer_store_dwordx4 {vr(A,4)}, v{V_T+2}, {srd(SRD_WS)}, s13 offen sc1")
            a("s_add_u32 s13, s13, 65536")
            a(f"buffer_store_dwordx4 {vr(A+4,4)}, v{V_T+2}, {srd(SRD_WS)}, s13 offen sc1")
            a("s_add_u32 s13, s13, 65536")

def epi_v_unit(a, acc, unit_sgpr, tile0, E):
    epi_common(a, E, tile0, 2)
    for t in range(2): epi_meancorr(a, E, t, acc + 16 * t, True)
    a(f"v_lshrrev_b32 v{V_T}, 5, v0")
    a(f"v_lshlrev_b32 v{V_T}, 4, v{V_T}")
    a(f"s_lshl_b32 s10, s{S_WAVE}, 7")
    a(f"v_add_u32 v{V_T}, s10, v{V_T}")
    R = ACCX
    for q in range(4): a(f"ds_read_b128 {vr(R+4*q,4)}, v{V_T} offset:{LDS_RS + q*32}")
    a(f"v_and_b32 v{V_T+2}, 15, v0")
    a(f"v_lshlrev_b32 v{V_T+2}, 5, v{V_T+2}")
    a(f"v_lshrrev_b32 v{V_T+3}, 5, v0")
    a(f"v_lshlrev_b32 v{V_T+3}, 4, v{V_T+3}")
    a(f"v_add_u32 v{V_T+2}, v{V_T+2}, v{V_T+3}")
    a(f"v_lshrrev_b32 v{V_T+3}, 4, v0")
    a(f"v_and_b32 v{V_T+3}, 1, v{V_T+3}")
    a(f"v_lshlrev_b32 v{V_T+3}, 16, v{V_T+3}")
    a(f"v_add_u32 v{V_T+2}, v{V_T+2}, v{V_T+3}")
    a(f"s_lshl_b32 s13, s{unit_sgpr}, 18")
    a(f"s_lshl_b32 s14, s{S_RB}, 12")
    a("s_add_u32 s13, s13, s14")
    a(f"s_lshl_b32 s14, s{S_WAVE}, 10")
    a("s_add_u32 s13, s13, s14")
    a("s_waitcnt lgkmcnt(0)")
    for t in range(2):
        A = acc + 16 * t
        for r in range(16): a(f"v_mul_f32 v{A+r}, v{A+r}, v{R+r}")
        for r in range(8): a(f"v_cvt_pk_bf16_f32 v{A+r}, v{A+2*r}, v{A+2*r+1}")
        a(f"buffer_store_dwordx4 {vr(A,4)}, v{V_T+2}, {srd(SRD_WS)}, s13 offen sc1")
        a(f"buffer_store_dwordx4 {vr(A+4,4)}, v{V_T+2}, {srd(SRD_WS)}, s13 offen offset:512 sc1")
        a("s_add_u32 s13, s13, 131072")

def c_phaseA(a):
    fin_ids(a)
    if not os.environ.get("NOPREP"): c_prep(a)
    epoch_ready(a)
    c_setup(a)
    stamp(a, 1, 12, 13)
    P3 = Pass(a, pass_tiles('P'), False, ACCX, 12, 8, 4, (FR0, FR1))
    def pre1(sn):
        if sn == 4: a("s_waitcnt vmcnt(0)")
    def post1(sn):
        if sn == 4:
            a(f"s_cmp_eq_u32 s{S_WAVE}, 3")
            a("s_cbranch_scc0 L_tw3_ep")
            a(f"v_mov_b32 v{V_T}, 0")
            a("v_mov_b32 v49, 1")
            a("s_mov_b64 exec, 1")
            a(f"buffer_atomic_add v49, v{V_T}, {srd(SRD_DBG)}, 0 offen sc0 sc1")
            a("s_mov_b64 exec, -1")
            a("L_tw3_ep:")
        if sn == 4:
            a(f"s_cmp_eq_u32 s{S_WAVE}, 0")
            a("s_cbranch_scc0 L_tw3_f1")
            flag_set(a, 1, V_T, V_T + 1)
            a("L_tw3_f1:")

    a(f"s_cmp_eq_u32 s{S_I}, 3")
    a("s_cbranch_scc1 L_c_p1B")
    st = (a.c_agw.bias, a.c_agx.bias)
    import re
    for var in ('A', 'B'):
        if var == 'B':
            a()if False else None
            a("L_c_p1B:"); a.forget_waits(); a.c_agw.bias, a.c_agx.bias = st
        n0 = len(a.lines)
        P1 = Pass(a, pass_tiles('P') if var == 'A' else pass_tiles('Q', 2), False, ACCX, 0, 8, 4, (FR0, FR1), loadx=True)
        P1.entry()
        P1.body(pre_barrier=lambda sn: (pre1(sn), post1(sn - 1)))
        for k in range(n0, len(a.lines)): a.lines[k] = re.sub(r"L_tw3_(\w+)", lambda m: f"L_tw3{var}_{m.group(1)}", a.lines[k])
        if var == 'A': a("s_branch L_c_p1done")
    a("L_c_p1done:")
    stamp(a, 2, 12, 13)
    a("s_waitcnt vmcnt(0)")
    a(f"s_cmp_eq_u32 s{S_WAVE}, 3")
    a("s_cbranch_scc0 L_c_noep2")
    a("v_readfirstlane_b32 s10, v49")
    a("s_cmp_eq_u32 s10, 255")
    a("s_cbranch_scc0 L_c_noep2")
    a("s_add_u32 s10, s32, 1")
    a(f"v_mov_b32 v{V_T}, s10")
    a(f"v_mov_b32 v{V_T+1}, {WS_FLAG + FL_EPOCH*128}")
    a("s_mov_b64 exec, 1")
    a(f"buffer_store_dword v{V_T}, v{V_T+1}, {srd(SRD_WS)}, 0 offen sc1")
    a("s_mov_b64 exec, -1")
    a("L_c_noep2:")
    a("s_barrier")
    def post2(sn):
        if sn in (9, 10, 11) and os.environ.get("W3T"): c_touch_w3(a, sn - 9, 8)
    a(f"s_cmp_lt_u32 s{S_I}, 2")
    a("s_cbranch_scc1 L_c_p2V")
    st = (a.c_agw.bias, a.c_agx.bias)
    for var in ('N', 'V'):
        if var == 'V':
            a("L_c_p2V:"); a.forget_waits(); a.c_agw.bias, a.c_agx.bias = st
        n0 = len(a.lines)
        P2 = Pass(a, pass_tiles('Q', 1), var == 'V', ACCY, 8, 4, 8, (FR0, FR0 + 8))
        P2.reads(0, range(2), False)
        P2.body(pre_barrier=lambda sn: post2(sn))
        for k in range(n0, len(a.lines)): a.lines[k] = re.sub(r"L_tw3_(\w+)", lambda m: f"L_tw3{var}_{m.group(1)}", a.lines[k])
        if var == 'N': a("s_branch L_c_p2done")
    a("L_c_p2done:")
    stamp(a, 4, 12, 13)
    a("s_barrier")
    a(f"s_cmp_eq_u32 s{S_I}, 3")
    a("s_cbranch_scc1 L_c_e1B")
    epi_pair_unit(a, ACCX, S_U_EARLY, 0, FR0)
    a("s_branch L_c_e1done")
    a("L_c_e1B:")
    a(f"s_lshl_b32 s93, s{S_M}, 2")
    a("s_add_u32 s93, s93, 1")
    a("s_add_u32 s94, s93, 1")
    epi_n_units(a, ACCX, [93, 94], 0, FR0)
    a("L_c_e1done:")
    a.nop(16)
    stamp(a, 3, 12, 13)
    a(f"s_cmp_lt_u32 s{S_I}, 2")
    a("s_cbranch_scc1 L_c_e2V")
    epi_n_units(a, ACCY, [S_U_Q2], 4, FR0)
    a("s_branch L_c_e2done")
    a("L_c_e2V:")
    epi_v_unit(a, ACCY, S_U_Q2, 4, FR0)
    a("L_c_e2done:")
    a.nop(16)
    stamp(a, 5, 12, 13)
    P3.reads(0, range(4), False)
    def pre3(snext):
        if snext == 14: a("s_waitcnt vmcnt(0)")
    def post3(snext):
        if snext == 14:
            a(f"s_cmp_eq_u32 s{S_WAVE}, 0")
            a("s_cbranch_scc0 L_c_nof2")
            flag_set(a, 2, V_T, V_T + 1)
            a("L_c_nof2:")
    P3.body(pre_barrier=pre3, post_barrier=post3)
    stamp(a, 6, 12, 13)
def flag_store(a, line_sgpr_expr, stage, t0, t1):
    a(f"s_add_u32 s11, s{S_TAG}, {stage}")
    a(f"v_mov_b32 v{t0}, s11")
    a(f"v_mov_b32 v{t1}, s10")
    a(f"s_mov_b32 s11, {WS_FLAG}")
    a("s_mov_b64 exec, 1")
    a(f"buffer_store_dword v{t0}, v{t1}, {srd(SRD_WS)}, s11 offen sc1")
    a("s_mov_b64 exec, -1")

def flag_set(a, stage, t0, t1):
    if stage == 1:
        a(f"s_lshl_b32 s10, s{S_RB}, 7")
        a(f"s_lshl_b32 s12, s{S_CG}, 2")
        a("s_add_u32 s10, s10, s12")
        a(f"s_add_u32 s10, s10, {FL_1R*128}")
        flag_store(a, None, 1, t0, t1)
        a(f"s_lshl_b32 s10, s{S_CG}, 7")
        a(f"s_lshl_b32 s12, s{S_RB}, 2")
        a("s_add_u32 s10, s10, s12")
        a(f"s_add_u32 s10, s10, {FL_1C*128}")
        flag_store(a, None, 1, t0, t1)
    elif stage in (2, 3):
        a(f"s_lshl_b32 s10, s{S_RB}, 7")
        a(f"s_lshl_b32 s12, s{S_CG}, 2")
        a("s_add_u32 s10, s10, s12")
        a(f"s_add_u32 s10, s10, {(FL_2 if stage == 2 else FL_3)*128}")
        flag_store(a, None, stage, t0, t1)
    else:
        a(f"s_lshr_b32 s10, s{S_RB}, 1")
        a("s_lshl_b32 s10, s10, 7")
        a(f"s_and_b32 s12, s{S_RB}, 1")
        a("s_lshl_b32 s12, s12, 4")
        a(f"s_add_u32 s12, s12, s{S_CG}")
        a("s_lshl_b32 s12, s12, 2")
        a("s_add_u32 s10, s10, s12")
        a(f"s_add_u32 s10, s10, {FL_4*128}")
        flag_store(a, None, 4, t0, t1)

def flag_wait(a, nlanes, stage, t0, voff, tag, sleep=4):
    if NOFLAG: return
    a(f"s_add_u32 s13, s{S_TAG}, {stage}")
    a(f"s_mov_b32 s14, {WS_FLAG}")
    a("s_mov_b32 s15, 0")
    a(f"L_{tag}:")
    a("s_add_u32 s15, s15, 1")
    a("s_cmp_gt_u32 s15, 100000")
    a(f"s_cbranch_scc1 L_{tag}_ok")
    a(f"buffer_load_dword v{t0}, v{voff}, {srd(SRD_WS)}, s14 offen sc1")
    a("s_waitcnt vmcnt(0)")
    a(f"v_cmp_ne_u32 vcc, s13, v{t0}")
    if nlanes < 64:
        if nlanes <= 32: a(f"s_and_b64 vcc, vcc, {(1 << nlanes) - 1:#x}")
    a("s_cmp_eq_u64 vcc, 0")
    a(f"s_cbranch_scc1 L_{tag}_ok")
    a(f"s_sleep {sleep}")
    a(f"s_branch L_{tag}")
    a(f"L_{tag}_ok:")

def wg_wait(a, poller_cond_sgpr, poller_val, setup_voff, nlanes, stage, cnt_off, t0, t1, tag):
    a(f"s_cmp_eq_u32 s{poller_cond_sgpr}, {poller_val}")
    a(f"s_cbranch_scc0 L_{tag}_np")
    setup_voff(t1)
    flag_wait(a, nlanes, stage, t0, t1, tag)
    lds_inc(a, cnt_off, t0, t1)
    a(f"s_branch L_{tag}_dn")
    a(f"L_{tag}_np:")
    lds_wait_count(a, cnt_off, 1, t0, t1, tag + "_l")
    a(f"L_{tag}_dn:")

def lds_arrive_last(a, cnt_off, t0, t1, tag, n=4):
    a(f"v_mov_b32 v{t0}, {cnt_off}")
    a(f"v_mov_b32 v{t1}, 1")
    a("s_mov_b64 exec, 1")
    a(f"ds_add_rtn_u32 v{t1}, v{t0}, v{t1}")
    a("s_waitcnt lgkmcnt(0)")
    a("s_mov_b64 exec, -1")
    a(f"v_readfirstlane_b32 s10, v{t1}")
    a(f"s_cmp_eq_u32 s10, {n-1}")
    a(f"s_cbranch_scc0 L_{tag}_skip")

def lds_inc(a, cnt_off, t0, t1):
    a(f"v_mov_b32 v{t0}, {cnt_off}")
    a(f"v_mov_b32 v{t1}, 1")
    a("s_mov_b64 exec, 1")
    a(f"ds_add_u32 v{t0}, v{t1}")
    a("s_mov_b64 exec, -1")

def lds_wait_count(a, cnt_off, n, t0, t1, tag):
    a(f"v_mov_b32 v{t0}, {cnt_off}")
    a("s_mov_b32 s15, 0")
    a(f"L_{tag}:")
    a("s_add_u32 s15, s15, 1")
    a("s_cmp_gt_u32 s15, 1000000")
    a(f"s_cbranch_scc1 L_{tag}_ok")
    a(f"ds_read_b32 v{t1}, v{t0}")
    a("s_waitcnt lgkmcnt(0)")
    a(f"v_readfirstlane_b32 s10, v{t1}")
    a(f"s_cmp_ge_u32 s10, {n}")
    a(f"s_cbranch_scc1 L_{tag}_ok")
    a("s_sleep 1")
    a(f"s_branch L_{tag}")
    a(f"L_{tag}_ok:")

AT_Q, AT_K, AT_V, AT_S, AT_O, AT_NM, AT_BD, AT_BO, AT_P, AT_T = 8, 16, 52, 124, 172, 188, 204, 220, 236, 2
S_QB0, S_HEAD = 93, 94
BIG = 1.0e30

def at_setup(a):
    a(f"s_and_b32 s10, s{S_RB}, 1")
    a("s_lshl_b32 s10, s10, 4")
    a(f"s_add_u32 s{S_HEAD}, s10, s{S_CG}")
    a(f"s_lshr_b32 s10, s{S_RB}, 1")
    a("s_lshl_b32 s10, s10, 3")
    a(f"s_lshl_b32 s11, s{S_HW}, 1")
    a(f"s_add_u32 s{S_QB0}, s10, s11")
    a("v_and_b32 v2, 31, v0")
    a("v_lshrrev_b32 v4, 5, v0")
    a("v_lshlrev_b32 v5, 4, v4")
    a("v_lshlrev_b32 v3, 5, v2")
    a("v_add_u32 v1, v3, v5")
    a("v_lshlrev_b32 v4, 2, v4")
    a("v_sub_u32 v4, v2, v4")
    a(f"v_mov_b32 v5, {f32bits(-BIG):#x}")
    for r in range(16):
        kr = (r & 3) + 8 * (r >> 2)
        a(f"v_cmp_le_i32 vcc, {kr}, v4")
        a(f"v_cndmask_b32_e64 v{AT_BD+r}, v5, 0, vcc")
        a(f"v_cndmask_b32_e64 v{AT_BO+r}, 0, v5, vcc")
    for r in range(72): a(f"v_mov_b32 v{AT_V+r}, 0x3f803f80")
    a("s_mov_b32 s96, 0x0000ffff")
    a("s_mov_b32 s97, 0x0000ffff")

def at_load_kv(a, slot, j, what="kv"):
    a(f"s_add_i32 s10, s{S_QB0}, {j-8}")
    a("s_max_i32 s10, s10, 0")
    a("s_lshl_b32 s10, s10, 10")
    a(f"s_lshl_b32 s11, s{S_HEAD}, 16")
    a("s_add_u32 s10, s10, s11")
    if "k" in what:
        a(f"s_add_u32 s11, s10, {WS_K}")
        a(f"buffer_load_dwordx4 {vr(AT_K+4*slot,4)}, v1, {srd(SRD_WS)}, s11 offen sc1")
    if "v" in what:
        a(f"s_add_u32 s11, s10, {WS_V}")
        a("s_mov_b64 exec, s[96:97]")
        a(f"buffer_load_dwordx4 {vr(AT_V+8*slot,4)}, v1, {srd(SRD_WS)}, s11 offen sc1")
        a(f"buffer_load_dwordx4 {vr(AT_V+8*slot+4,4)}, v1, {srd(SRD_WS)}, s11 offen offset:512 sc1")
        a("s_mov_b64 exec, -1")

def at_loads(a):
    a(f"s_lshl_b32 s11, s{S_HEAD}, 16")
    a(f"s_lshl_b32 s10, s{S_QB0}, 10")
    a("s_add_u32 s12, s10, s11")
    a(f"buffer_load_dwordx4 {vr(AT_Q,4)}, v1, {srd(SRD_WS)}, s12 offen sc1")
    for j in range(9): at_load_kv(a, j, j, "k")
    for j in range(9): at_load_kv(a, j, j, "v")
    a(f"buffer_load_dwordx4 {vr(AT_Q+4,4)}, v1, {srd(SRD_WS)}, s12 offen offset:1024 sc1")

def at_item(a, it, fast, tag, mid=None, dry=False):
    q = vr(AT_Q, 4) if fast else vr(AT_Q + 4 * it, 4)
    slot = (lambda j: j) if fast else (lambda j: (j + it) % 9)
    K = lambda j: vr(AT_K + 4 * slot(j), 4)
    V1 = lambda j: vr(AT_V + 8 * slot(j), 4)
    V2 = lambda j: vr(AT_V + 8 * slot(j) + 4, 4)
    S = lambda b: AT_S + 16 * b
    M = AT_T
    if not fast:
        a(f"s_add_u32 s10, s{S_QB0}, {it}")
        a("s_sub_i32 s95, 8, s10")
        a("s_max_i32 s95, s95, 0")
    a(f"v_mov_b32 v{M}, {f32bits(-BIG):#x}")
    cop = lambda j: vr(AT_BO, 16) if j == 0 else (vr(AT_BD, 16) if j == 8 else "0")
    for qq in range(1, 4): a(f"v_mov_b32 v{M+qq}, {f32bits(-BIG):#x}")
    def maxops(b):
        for r in range(0, 16, 2):
            mm = M + ((r // 2) & 3)
            a(f"v_max3_f32 v{mm}, v{S(b)+r}, v{S(b)+r+1}, v{mm}")
    if fast:
        a(f"v_mfma_f32_32x32x16_bf16 {vr(S(0),16)}, {K(0)}, {q}, {cop(0)}")
        a(f"v_mfma_f32_32x32x16_bf16 {vr(S(1),16)}, {K(1)}, {q}, {cop(1)}")
        for j in range(9):
            if j + 2 < 9: a(f"v_mfma_f32_32x32x16_bf16 {vr(S((j+2)%3),16)}, {K(j+2)}, {q}, {cop(j+2)}")
            maxops(j % 3)
    else:
        for j in range(9):
            a(f"s_cmp_gt_i32 s95, {j}")
            a(f"s_cbranch_scc1 L_{tag}_p1_{j}")
            a(f"v_mfma_f32_32x32x16_bf16 {vr(S(0),16)}, {K(j)}, {q}, {cop(j)}")
            maxops(0)
            a(f"L_{tag}_p1_{j}:")
            a.nop(8)
    if mid: mid()
    a(f"v_max_f32 v{M}, v{M}, v{M+1}")
    a(f"v_max_f32 v{M+2}, v{M+2}, v{M+3}")
    a(f"v_max_f32 v{M}, v{M}, v{M+2}")
    a(f"v_mov_b32 v{M+1}, v{M}")
    a(f"v_permlane32_swap_b32 v{M}, v{M+1}")
    a(f"v_max_f32 v{M}, v{M}, v{M+1}")
    a(f"v_sub_f32 v{M}, 0, v{M}")
    for r in range(16): a(f"v_mov_b32 v{AT_NM+r}, v{M}")
    def qk(j, b):
        if j == 0 or j == 8:
            bias = AT_BO if j == 0 else AT_BD
            for r in range(16): a(f"v_add_f32 v{S(b)+r}, v{bias+r}, v{M}")
            a(f"v_mfma_f32_32x32x16_bf16 {vr(S(b),16)}, {K(j)}, {q}, {vr(S(b),16)}")
        else:
            a(f"v_mfma_f32_32x32x16_bf16 {vr(S(b),16)}, {K(j)}, {q}, {vr(AT_NM,16)}")
    def soft(j, b, pb):
        for r in range(16): a(f"v_exp_f32 v{S(b)+r}, v{S(b)+r}")
        for r in range(8): a(f"v_cvt_pk_bf16_f32 v{AT_P+8*pb+r}, v{S(b)+2*r}, v{S(b)+2*r+1}")
    def pv(j, pb, first):
        c = "0" if first else vr(AT_O, 16)
        a(f"v_mfma_f32_32x32x16_bf16 {vr(AT_O,16)}, {V1(j)}, {vr(AT_P+8*pb,4)}, {c}")
        a(f"v_mfma_f32_32x32x16_bf16 {vr(AT_O,16)}, {V2(j)}, {vr(AT_P+8*pb+4,4)}, {vr(AT_O,16)}")
    if fast:
        qk(0, 0); qk(1, 1)
        for j in range(9):
            if j + 2 < 9: qk(j + 2, (j + 2) % 3)
            soft(j, j % 3, j & 1)
            pv(j, j & 1, j == 0)
    else:
        for r in range(16): a(f"v_mov_b32 v{AT_O+r}, 0")
        for j in range(9):
            a(f"s_cmp_gt_i32 s95, {j}")
            a(f"s_cbranch_scc1 L_{tag}_p2_{j}")
            qk(j, 0); soft(j, 0, 0); pv(j, 0, False)
            a(f"L_{tag}_p2_{j}:")
            a.nop(16)
    a(f"v_rcp_f32 v{M}, v{AT_O+8}")
    for r in range(8): a(f"v_mul_f32 v{AT_O+r}, v{AT_O+r}, v{M}")
    for r in range(4): a(f"v_cvt_pk_bf16_f32 v{AT_P+r}, v{AT_O+2*r}, v{AT_O+2*r+1}")
    if not fast: at_store(a, it)

def at_store(a, it):
    M = AT_T
    a(f"s_add_u32 s10, s{S_QB0}, {it}")
    a(f"s_mul_i32 s10, s10, {ACT_RT}")
    a(f"s_add_u32 s11, s{S_HEAD}, 112")
    a("s_lshl_b32 s11, s11, 10")
    a("s_add_u32 s10, s10, s11")
    a(f"s_add_u32 s10, s10, {WS_ACT}")
    a(f"v_lshlrev_b32 v{M+1}, 4, v0")
    a(f"buffer_store_dwordx4 {vr(AT_P,4)}, v{M+1}, {srd(SRD_WS)}, s10 offen sc1")

S_IT = 89
def attention(a):
    at_setup(a)
    def voff_at(t1):
        a(f"s_and_b32 s10, s{S_RB}, 0xfffffffe")
        a("s_sub_i32 s10, s10, 2")
        a("s_max_i32 s10, s10, 0")
        a(f"s_add_u32 s10, s10, {FL_2}")
        a("s_lshl_b32 s10, s10, 7")
        a(f"v_lshrrev_b32 v{t1}, 4, v0")
        a(f"v_lshlrev_b32 v{t1}, 7, v{t1}")
        a("v_and_b32 v6, 15, v0")
        a("v_lshlrev_b32 v6, 2, v6")
        a(f"v_add_u32 v{t1}, v{t1}, v6")
        a(f"v_add_u32 v{t1}, s10, v{t1}")
    if os.environ.get("DRY"):
        a(f"s_cmp_lt_u32 s{S_RB}, 2")
        a("s_cbranch_scc1 L_at_dry_ret")
        a(f"s_mov_b32 s{S_IT}, 2")
        a("s_branch L_at_body")
    a("L_at_dry_ret:")
    a.forget_waits()
    a.nop(16)
    wg_wait(a, S_HW, 2, voff_at, 64, 2, LDS_CNT + 28, 6, 7, "fw_at")
    stamp(a, 2, 6, 7)
    at_loads(a)
    a(f"s_cmp_lt_u32 s{S_RB}, 2")
    a("s_cbranch_scc1 L_at_slow")
    a(f"s_mov_b32 s{S_IT}, 0")
    a("s_waitcnt vmcnt(19)")
    a.at_pending = True
    a("s_branch L_at_body")
    a("L_at_slow:"); a.forget_waits()
    a("s_waitcnt vmcnt(0)")
    at_item(a, 0, False, "s0")
    at_load_kv(a, 0, 9)
    a("s_waitcnt vmcnt(0)")
    at_item(a, 1, False, "s1")
    a("s_branch L_at_done")
    a("L_at_body:"); a.forget_waits()
    def mid():
        a("s_waitcnt vmcnt(1)")
    at_item(a, 0, True, "f0", mid=mid)
    a(f"s_cmp_eq_u32 s{S_IT}, 2")
    a("s_cbranch_scc1 L_at_dry_ret")
    a(f"s_cmp_eq_u32 s{S_IT}, 1")
    a("s_cbranch_scc1 L_at_fin")
    a("s_waitcnt vmcnt(0)")
    a.nop(16)
    for r in range(4): a(f"v_mov_b32 v{AT_Q+r}, v{AT_Q+4+r}")
    for r in range(32): a(f"v_mov_b32 v{AT_K+r}, v{AT_K+4+r}")
    at_load_kv(a, 8, 9, "k")
    for r in range(64): a(f"v_mov_b32 v{AT_V+r}, v{AT_V+8+r}")
    at_load_kv(a, 8, 9, "v")
    at_store(a, 0)
    a(f"s_mov_b32 s{S_IT}, 1")
    a("s_waitcnt vmcnt(3)")
    a("s_branch L_at_body")
    a("L_at_fin:")
    a.forget_waits()
    at_store(a, 1)
    a("L_at_done:")
    stamp(a, 4, 6, 7)
    a("s_waitcnt vmcnt(0)")
    lds_arrive_last(a, LDS_CNT + 4, 6, 7, "at_fl")
    flag_set(a, 4, 6, 7)
    a("L_at_fl_skip:")

FD = 12
F_ACC = 64
F_ACT = 128
F_W = 224
F_AW, F_VW, F_VA, F_T = 240, 242, 243, 244
F_RING = 24 * 1024
S_FL, S_ACTH, S_ACTO, S_WDO, S_WOO = 88, 84, 85, 82, 83

def f_ksteps():
    L = []
    for u in (0, 2, 4, 1, 3, 5, 6):
        for jj in range(4): L.append((0, 4 * u + jj))
    for hd in range(8): L.append((1, hd))
    return L

def f_setup(a):
    KQ = S_WAVE
    a(f"s_mul_i32 s{S_FL}, s{KQ}, {F_RING}")
    a(f"s_add_u32 s{S_FL}, s{S_FL}, {BLK}")
    a(f"s_mul_i32 s89, s{S_FRT}, {2*ACT_RT}")
    a(f"s_add_u32 s89, s89, {WS_ACT}")
    a(f"s_mul_i32 s10, s{KQ}, {28*1024}")
    a(f"s_add_u32 s{S_ACTH}, s89, s10")
    a(f"s_lshl_b32 s10, s{KQ}, 13")
    a(f"s_add_u32 s{S_ACTO}, s89, s10")
    a(f"s_add_u32 s{S_ACTO}, s{S_ACTO}, {112*1024}")
    a(f"s_lshl_b32 s11, s{S_FCB}, 7")
    a(f"s_mul_i32 s10, s{KQ}, {448*1024}")
    a(f"s_add_u32 s{S_WDO}, s10, s11")
    a(f"s_lshl_b32 s10, s{KQ}, 17")
    a(f"s_add_u32 s{S_WOO}, s10, s11")
    t = F_ACT
    a(f"v_lshrrev_b32 v{t}, 3, v0")
    a(f"v_lshlrev_b32 v{t}, 10, v{t}")
    a(f"v_and_b32 v{t+1}, 7, v0")
    a(f"v_lshrrev_b32 v{t+2}, 4, v0")
    a(f"v_and_b32 v{t+2}, 1, v{t+2}")
    a(f"v_lshlrev_b32 v{t+2}, 2, v{t+2}")
    a(f"v_xor_b32 v{t+1}, v{t+1}, v{t+2}")
    a(f"v_lshlrev_b32 v{t+1}, 4, v{t+1}")
    a(f"v_add_u32 v{F_VW}, v{t}, v{t+1}")
    a(f"v_lshlrev_b32 v{F_VA}, 4, v0")
    a(f"v_lshrrev_b32 v{t}, 4, v0")
    a(f"v_and_b32 v{t+1}, 1, v{t}")
    a(f"v_lshrrev_b32 v{t+2}, 1, v{t}")
    a(f"v_and_b32 v{t+3}, 15, v0")
    a(f"v_lshrrev_b32 v{t+4}, 2, v{t+3}")
    a(f"v_and_b32 v{t+5}, 3, v{t+3}")
    a(f"v_lshlrev_b32 v{t+6}, 2, v{t+2}")
    a(f"v_add_u32 v{t+6}, v{t+6}, v{t+4}")
    a(f"v_lshlrev_b32 v{t+6}, 7, v{t+6}")
    a(f"v_and_b32 v{t+7}, 1, v{t+5}")
    a(f"v_lshlrev_b32 v{t+7}, 3, v{t+7}")
    a(f"v_add_u32 v{t+6}, v{t+6}, v{t+7}")
    a(f"v_lshrrev_b32 v{t+7}, 1, v{t+5}")
    a(f"v_lshlrev_b32 v{t+7}, 4, v{t+7}")
    a(f"v_lshrrev_b32 v{t+8}, 1, v{t+4}")
    a(f"v_lshlrev_b32 v{t+8}, 6, v{t+8}")
    a(f"v_xor_b32 v{t+7}, v{t+7}, v{t+8}")
    a(f"v_lshlrev_b32 v{t+8}, 5, v{t+1}")
    a(f"v_xor_b32 v{t+7}, v{t+7}, v{t+8}")
    a(f"v_add_u32 v{t+6}, v{t+6}, v{t+7}")
    a(f"v_add_u32 v{F_AW}, s{S_FL}, v{t+6}")
    a(f"v_xor_b32 v{F_AW+1}, 64, v{F_AW}")

def f_issue_w(a, n):
    is_o, rel = f_ksteps()[n]; sl = n % FD
    if is_o: a(f"s_add_u32 s10, s{S_WOO}, {rel*16*1024}"); sr = SRD_WO
    else: a(f"s_add_u32 s10, s{S_WDO}, {rel*16*1024}"); sr = SRD_WD
    a(f"s_add_u32 m0, s{S_FL}, {sl*2048}")
    a("s_add_u32 s11, s10, 8192")
    a(f"buffer_load_dwordx4 v{F_VW}, {srd(sr)}, s10 offen lds")
    a(f"s_add_u32 m0, s{S_FL}, {sl*2048+1024}")
    a("s_nop 0")
    a(f"buffer_load_dwordx4 v{F_VW}, {srd(sr)}, s11 offen lds")

def f_issue_a(a, n):
    is_o, rel = f_ksteps()[n]; sl = n % FD
    base = S_ACTO if is_o else S_ACTH
    a(f"s_add_u32 s10, s{base}, {rel*1024}")
    a(f"s_add_u32 s11, s10, {ACT_RT}")
    a(f"buffer_load_dwordx4 {vr(F_ACT+8*sl,4)}, v{F_VA}, {srd(SRD_WS)}, s10 offen sc1")
    a(f"buffer_load_dwordx4 {vr(F_ACT+8*sl+4,4)}, v{F_VA}, {srd(SRD_WS)}, s11 offen sc1")

def f_wreads(a, n):
    sl = n % FD; fs = F_W + 8 * (n & 1)
    for t in range(2):
        a(f"ds_read_b64_tr_b16 {vr(fs+4*t,2)}, v{F_AW+t} offset:{sl*2048}")
        a(f"ds_read_b64_tr_b16 {vr(fs+4*t+2,2)}, v{F_AW+t} offset:{sl*2048+1024}")

def f_mfma(a, n):
    fs = F_W + 8 * (n & 1); sl = n % FD
    for rt in range(2):
        for t in range(2):
            acc = vr(F_ACC + 16 * (2 * rt + t), 16)
            c = acc if n > 0 else "0"
            a(f"v_mfma_f32_32x32x16_bf16 {acc}, {vr(fs+4*t,4)}, {vr(F_ACT+8*sl+4*rt,4)}, {c}")

def final_segment(a, n0, n1, NK=36):
    raise NotImplementedError

def final_gemm(a):
    NK = 36
    seg_of = lambda n: 0 if n < 12 else (1 if n < 28 else 2)
    seg_start = [0, 12, 28, 36]
    q = a.fq
    def wait_for(tags):
        idxs = [i for i, t in enumerate(q) if t in tags]
        if not idxs: return
        last = max(idxs)
        n_after = len(q) - 1 - last
        a(f"s_waitcnt vmcnt({n_after})")
        del q[:last + 1]
    def iw(n): f_issue_w(a, n); q.extend([('w', n)] * 2)
    def ia(n): f_issue_a(a, n); q.extend([('a', n)] * 2)
    a_issued = a.f_a_issued; w_issued = a.f_w_issued
    for seg in range(3):
        s0, s1 = seg_start[seg], seg_start[seg + 1]
        if seg > 0:
            def voff_f(t1, seg=seg):
                if seg == 1:
                    a(f"s_lshr_b32 s10, s{S_FRT}, 1")
                    a(f"s_add_u32 s10, s10, {FL_3}")
                else:
                    a(f"s_lshr_b32 s10, s{S_FRT}, 2")
                    a(f"s_add_u32 s10, s10, {FL_4}")
                a("s_lshl_b32 s10, s10, 7")
                a(f"v_lshlrev_b32 v{t1}, 2, v0")
                a(f"v_add_u32 v{t1}, s10, v{t1}")
            a("s_waitcnt vmcnt(0)")
            wg_wait(a, S_WAVE, 0, voff_f, 16 if seg == 1 else 32, 3 if seg == 1 else 4, LDS_CNT + 32 + 4 * seg, F_T, F_T + 1, f"fw_f{seg}")
            q.clear()
            stamp(a, 8 + seg, F_T, F_T + 1)
            q.extend([('x',)] * NST)
        while a_issued < min(s1, s0 + FD):
            ia(a_issued); a_issued += 1
        wait_for([('w', s0), ('a', s0)])
        f_wreads(a, s0)
        for n in range(s0, s1):
            if n + 1 < s1:
                wait_for([('w', n + 1), ('a', n + 1)])
                f_wreads(a, n + 1)
                a("s_waitcnt lgkmcnt(4)")
            else:
                a("s_waitcnt lgkmcnt(0)")
            f_mfma(a, n)
            if w_issued < NK and w_issued <= n + FD:
                iw(w_issued); w_issued += 1
            if a_issued < s1 and a_issued <= n + FD:
                ia(a_issued); a_issued += 1

RP = 272
def final_reduce(a):
    T = F_T
    a(f"v_and_b32 v{T}, 31, v0")
    a(f"s_movk_i32 s10, {RP}")
    a(f"v_mul_lo_u32 v{T}, v{T}, s10")
    a(f"v_lshrrev_b32 v{T+1}, 5, v0")
    a(f"v_lshlrev_b32 v{T+1}, 4, v{T+1}")
    a(f"v_add_u32 v{T}, v{T}, v{T+1}")
    a(f"v_add_u32 v{T}, s{S_FL}, v{T}")
    a("v_lshrrev_b32 v2, 3, v0")
    a("v_and_b32 v3, 7, v0")
    a("v_lshlrev_b32 v4, 10, v2")
    a("v_lshlrev_b32 v5, 4, v3")
    a("v_add_u32 v4, v4, v5")
    a(f"s_lshl_b32 s10, s{S_FRT}, 16")
    a(f"s_lshl_b32 s11, s{S_WAVE}, 14")
    a("s_add_u32 s10, s10, s11")
    a(f"s_lshl_b32 s11, s{S_FCB}, 7")
    a("s_add_u32 s12, s10, s11")
    a("s_add_u32 s13, s12, 8192")
    a(f"buffer_load_dwordx4 v[8:11], v4, {srd(SRD_X)}, s12 offen")
    a(f"buffer_load_dwordx4 v[12:15], v4, {srd(SRD_X)}, s13 offen")
    for rt in range(2):
        for t in range(2):
            for q in range(4):
                r = F_ACC + 16 * (2 * rt + t) + 4 * q
                a(f"ds_write_b128 v{T}, {vr(r,4)} offset:{rt*32*RP + (t*32+8*q)*4}")
    a("s_waitcnt lgkmcnt(0)")
    a(f"v_mov_b32 v6, {LDS_CNT+12}")
    a("v_mov_b32 v7, 1")
    a("s_mov_b64 exec, 1")
    a("ds_add_u32 v6, v7")
    a("s_mov_b64 exec, -1")
    lds_wait_count(a, LDS_CNT + 12, 4, 6, 7, "fr_bar")
    a(f"s_movk_i32 s10, {RP}")
    a("v_mul_lo_u32 v6, v2, s10")
    a("v_lshlrev_b32 v7, 5, v3")
    a("v_add_u32 v6, v6, v7")
    a(f"s_mul_i32 s10, s{S_WAVE}, {16*RP}")
    a(f"s_add_u32 s10, s10, {BLK}")
    a("v_add_u32 v6, s10, v6")
    a(f"v_add_u32 v7, {2*F_RING}, v6")
    B0 = 128
    for it in range(2):
        for w in range(4):
            base = B0 + 32 * it + 8 * w
            av = 6 + (w >> 1)
            a(f"ds_read_b128 {vr(base,4)}, v{av} offset:{(w&1)*F_RING + it*8*RP}")
            a(f"ds_read_b128 {vr(base+4,4)}, v{av} offset:{(w&1)*F_RING + it*8*RP + 16}")
    a("s_waitcnt vmcnt(0) lgkmcnt(0)")
    for it in range(2):
        b = B0 + 32 * it; xr = 8 + 4 * it
        for e in range(8):
            a(f"v_add_f32 v{b+e}, v{b+e}, v{b+8+e}")
            a(f"v_add_f32 v{b+16+e}, v{b+16+e}, v{b+24+e}")
        for e in range(8): a(f"v_add_f32 v{b+e}, v{b+e}, v{b+16+e}")
        for d in range(4):
            a(f"v_lshlrev_b32 v{b+8}, 16, v{xr+d}")
            a(f"v_and_b32 v{b+9}, 0xffff0000, v{xr+d}")
            a(f"v_add_f32 v{b+2*d}, v{b+2*d}, v{b+8}")
            a(f"v_add_f32 v{b+2*d+1}, v{b+2*d+1}, v{b+9}")
        for d in range(4): a(f"v_cvt_pk_bf16_f32 v{b+16+d}, v{b+2*d}, v{b+2*d+1}")
        a(f"buffer_store_dwordx4 {vr(b+16,4)}, v4, {srd(SRD_OUT)}, s{12+it} offen")

def c_phaseB(a):
    lds_inc(a, LDS_CNT + 8, 12, 13)
    epi_pair_unit(a, ACCX, S_U_LATE, 6, FR0)
    stamp(a, 7, 12, 13)
    lds_wait_count(a, LDS_CNT + 8, 4, 12, 13, "cbar")
    f_setup(a)
    a.fq = [('s',)] * (4 + NST)
    for n in range(FD):
        f_issue_w(a, n); a.fq.extend([('w', n)] * 2)
    a.f_w_issued = FD
    a(f"s_waitcnt vmcnt({2*FD})")
    del a.fq[:4 + NST]
    lds_arrive_last(a, LDS_CNT + 16, 12, 13, "c_fl2")
    flag_set(a, 3, 12, 13)
    a("L_c_fl2_skip:")
    def voff_f0(t1):
        a(f"s_lshr_b32 s10, s{S_FRT}, 1")
        a(f"s_add_u32 s10, s10, {FL_2}")
        a("s_lshl_b32 s10, s10, 7")
        a(f"v_lshlrev_b32 v{t1}, 2, v0")
        a(f"v_add_u32 v{t1}, s10, v{t1}")
    wg_wait(a, S_WAVE, 0, voff_f0, 16, 2, LDS_CNT + 32, F_T, F_T + 1, "fw_f0")
    for n in range(FD):
        f_issue_a(a, n); a.fq.extend([('a', n)] * 2)
    a.f_a_issued = FD

def gen():
    a = Asm()
    prologue(a)
    stamp(a, 0, 4, 5)
    touch_t0(a, 48)
    a(f"s_cmp_ge_u32 s{S_WAVE}, 4")
    a("s_cbranch_scc1 L_hwave")
    c_phaseA(a)
    c_phaseB(a)
    final_gemm(a)
    stamp(a, 11, F_T, F_T + 1)
    final_reduce(a)
    a("s_waitcnt vmcnt(0)")
    stamp(a, 12, 4, 5)
    a("s_endpgm")
    a("L_hwave:")
    a.forget_waits()
    a(f"s_sub_u32 s{S_HW}, s{S_WAVE}, 4")
    h_phaseA(a)
    stamp(a, 1, H_T, H_T + 1)
    attention(a)
    a("s_waitcnt vmcnt(0)")
    stamp(a, 5, 6, 7)
    a("L_exit:")
    a("s_endpgm")
    return a

HEADER = open("parallel_sum__sliding_block__glu_gated_glu__prompt.s.ref").read().split("; Override")[0]
def emit(path):
    a = gen()
    if a.errors:
        print("\n".join(a.errors[:30])); print(len(a.errors), "errors")
    out = HEADER + f"; @launch grid=(256,1,1) block=(512,1,1) lds={LDS_TOTAL}\n"
    out += '.amdgcn_target "amdgcn-amd-amdhsa--gfx950"\n.text\n'
    out += f".globl {KNAME}\n.p2align 8\n.type {KNAME},@function\n{KNAME}:\n" + a.text()
    out += (f'.section .rodata,"a"\n.p2align 6\n.amdhsa_kernel {KNAME}\n  .amdhsa_next_free_vgpr 256\n  .amdhsa_next_free_sgpr 102\n'
            f'  .amdhsa_accum_offset 256\n  .amdhsa_group_segment_fixed_size 0\n  .amdhsa_kernarg_size 80\n  .amdhsa_user_sgpr_count 2\n'
            f'  .amdhsa_user_sgpr_kernarg_segment_ptr 1\n  .amdhsa_system_sgpr_workgroup_id_x 1\n.end_amdhsa_kernel\n')
    open(path, "w").write(out)
    print("instrs", a.count, "nops", a.nops_inserted)
if __name__ == "__main__":
    emit(sys.argv[1] if len(sys.argv) > 1 else "f.s")
```

```python
import sys, os, struct
sys.path.insert(0, os.path.dirname(os.path.abspath(__file__)))
from asmlib import Asm

KNAME = "parallel_sum__sliding_block__glu_gated_glu__prompt_kernel"
STAMPS = int(os.environ.get("STAMPS", "0"))
NOFLAG = int(os.environ.get("NOFLAG", "0"))

WS_Q, WS_K, WS_V = 0, 2 << 20, 4 << 20
WS_ACT = 6 << 20
ACT_RT = 144 * 1024
WS_STAT = WS_ACT + 64 * ACT_RT
WS_CSP = WS_STAT + 65536
WS_FLAG = 16 << 20
FL_1R, FL_1C, FL_2, FL_3, FL_4, FL_EPOCH = 0, 16, 32, 48, 64, 80
WS_BYTES = WS_FLAG + 128 * 128
assert WS_CSP + 16 * 10240 <= WS_FLAG
S_TAG = 33
WS_DBG = 32 << 20

S_WAVE = 3
S_XCD, S_J, S_RB, S_CG, S_M, S_I = 4, 5, 6, 7, 8, 9
SRD_X, SRD_WQKV, SRD_WO, SRD_WG, SRD_WU, SRD_WD, SRD_OUT, SRD_DBG, SRD_WS = 36, 40, 44, 48, 52, 56, 60, 64, 68
LOG2E = 1.4426950408889634
QSCALE = 0.25 * LOG2E
def f32bits(x): return struct.unpack('<I', struct.pack('<f', x))[0]
def srd(n): return f"s[{n}:{n+3}]"
def vr(a, n=1): return f"v{a}" if n == 1 else f"v[{a}:{a+n-1}]"

BLK = 16384
NBLK = 9
LDS_MISC = 0
LDS_CS = LDS_MISC
LDS_ST = LDS_MISC + 10240
LDS_RS = LDS_MISC + 12288
LDS_CNT = LDS_MISC + 12800
LDS_TOTAL = 163840
def item_of(kind, s):
    return 2 * s if kind == 'X' else (2 * s + 1 if kind == 'W' else 16 + (s - 8))
def blk_addr(item): return BLK + (item % NBLK) * BLK
NITEMS = 28
def item_free_after(i):
    j = i - NBLK
    if j < 16: return j // 2 + 1
    return (j - 16 + 8) + 1

def stamp(a, idx, t0, t1):
    if not STAMPS: return
    a("s_memrealtime s[98:99]")
    a("s_memtime s[100:101]")
    a("s_waitcnt lgkmcnt(0)")
    a("s_lshl_b32 s99, s2, 3")
    a(f"s_add_u32 s99, s99, s{S_WAVE}")
    a("s_lshl_b32 s99, s99, 8")
    a(f"s_add_u32 s99, s99, {WS_DBG + idx*4}")
    a(f"v_mov_b32 v{t0}, s98")
    a(f"v_mov_b32 v{t1}, s99")
    a(f"buffer_store_dword v{t0}, v{t1}, {srd(SRD_WS)}, 0 offen")
    a(f"v_mov_b32 v{t0}, s100")
    a(f"buffer_store_dword v{t0}, v{t1}, {srd(SRD_WS)}, 0 offen offset:128")
NST = 2 if STAMPS else 0

LST = int(os.environ.get("LST", "0"))
def lstamp(a, k):
    if not LST: return
    a("s_memrealtime s[98:99]")
    a("s_waitcnt lgkmcnt(0)")
    a(f"s_mov_b32 s{16+k}, s98")
def ldump(a, t0, t1):
    if not LST: return
    a("s_lshl_b32 s99, s2, 3")
    a(f"s_add_u32 s99, s99, s{S_WAVE}")
    a("s_lshl_b32 s99, s99, 8")
    a(f"s_add_u32 s99, s99, {WS_DBG}")
    a(f"v_mov_b32 v{t1}, s99")
    for k in range(16):
        a(f"v_mov_b32 v{t0}, s{16+k}")
        a(f"buffer_store_dword v{t0}, v{t1}, {srd(SRD_WS)}, 0 offen offset:{4*k}")

def prologue(a):
    a("s_cmp_ge_u32 s2, 256")
    a("s_cbranch_scc1 L_exit")
    a("s_load_dwordx16 s[16:31], s[0:1], 0")
    a("s_load_dwordx4 s[32:35], s[0:1], 64")
    a("v_lshrrev_b32 v1, 6, v0")
    a("v_and_b32 v0, 63, v0")
    a(f"v_readfirstlane_b32 s{S_WAVE}, v1")
    a(f"s_and_b32 s{S_XCD}, s2, 7")
    a(f"s_lshr_b32 s{S_J}, s2, 3")
    a(f"s_and_b32 s10, s{S_XCD}, 1")
    a("s_lshl_b32 s10, s10, 3")
    a(f"s_and_b32 s11, s{S_J}, 7")
    a(f"s_add_u32 s{S_RB}, s10, s11")
    a(f"s_lshr_b32 s{S_M}, s{S_XCD}, 1")
    a(f"s_lshr_b32 s{S_I}, s{S_J}, 3")
    a(f"s_lshl_b32 s10, s{S_M}, 2")
    a(f"s_add_u32 s{S_CG}, s10, s{S_I}")
    units(a)
    a(f"s_and_b32 s{S_ROT}, s{S_J}, {int(os.environ.get('ROT', '0'))}")
    a("s_waitcnt lgkmcnt(0)")
    def mk(dst, lo, size):
        a(f"s_mov_b32 s{dst}, s{lo}")
        a(f"s_mov_b32 s{dst+1}, s{lo+1}")
        a(f"s_mov_b32 s{dst+2}, {size}")
        a(f"s_mov_b32 s{dst+3}, 0x20000")
    mk(SRD_X, 16, 2048 * 512 * 2)
    mk(SRD_WQKV, 18, 512 * 1536 * 2)
    mk(SRD_WO, 20, 512 * 512 * 2)
    mk(SRD_WG, 24, 512 * 1792 * 2)
    mk(SRD_WU, 26, 512 * 1792 * 2)
    mk(SRD_WD, 28, 1792 * 512 * 2)
    mk(SRD_OUT, 30, 2048 * 512 * 2)
    mk(SRD_DBG, 32, 256)
    mk(SRD_WS, 34, (64 << 20) if (STAMPS or LST) else WS_BYTES)
    a(f"s_add_u32 s12, s34, {WS_FLAG + FL_EPOCH*128}")
    a("s_addc_u32 s13, s35, 0")
    a("s_load_dword s32, s[12:13], 0")

S_U_EARLY, S_U_LATE, S_U_Q2 = 90, 91, 92
S_ROT = 95
def units(a):
    a(f"s_mul_i32 s{S_U_EARLY}, s{S_M}, 7")
    a(f"s_lshl_b32 s14, s{S_I}, 1")
    a(f"s_add_u32 s{S_U_EARLY}, s{S_U_EARLY}, s14")
    a(f"s_cmp_eq_u32 s{S_I}, 3")
    a("s_cselect_b32 s14, 0, 1")
    a(f"s_add_u32 s{S_U_LATE}, s{S_U_EARLY}, s14")
    a(f"s_lshl_b32 s10, s{S_M}, 1")
    a(f"s_add_u32 s10, s10, s{S_I}")
    a("s_add_u32 s10, s10, 16")
    a(f"s_lshl_b32 s11, s{S_M}, 2")
    a(f"s_cmp_eq_u32 s{S_I}, 2")
    a("s_cselect_b32 s10, s11, s10")
    a("s_add_u32 s12, s11, 3")
    a(f"s_cmp_eq_u32 s{S_I}, 3")
    a(f"s_cselect_b32 s{S_U_Q2}, s12, s10")

def tile_addr_regs(a, VAP, VAQ, tmp):
    t = tmp
    a(f"v_lshrrev_b32 v{t}, 4, v0")
    a(f"v_and_b32 v{t+1}, 1, v{t}")
    a(f"v_lshrrev_b32 v{t+2}, 1, v{t}")
    a(f"v_and_b32 v{t+3}, 15, v0")
    a(f"v_lshrrev_b32 v{t+4}, 2, v{t+3}")
    a(f"v_and_b32 v{t+5}, 3, v{t+3}")
    a(f"v_lshlrev_b32 v{t+6}, 3, v{t+2}")
    a(f"v_add_u32 v{t+6}, v{t+6}, v{t+4}")
    a(f"v_lshlrev_b32 v{t+6}, 7, v{t+6}")
    a(f"v_and_b32 v{t+7}, 1, v{t+5}")
    a(f"v_lshlrev_b32 v{t+7}, 3, v{t+7}")
    a(f"v_add_u32 v{t+6}, v{t+6}, v{t+7}")
    a(f"v_lshrrev_b32 v{t+7}, 1, v{t+5}")
    a(f"v_lshlrev_b32 v{t+7}, 4, v{t+7}")
    a(f"v_lshrrev_b32 v{t+8}, 1, v{t+4}")
    a(f"v_lshlrev_b32 v{t+8}, 6, v{t+8}")
    a(f"v_xor_b32 v{t+7}, v{t+7}, v{t+8}")
    a(f"v_lshlrev_b32 v{t+8}, 5, v{t+1}")
    a(f"v_xor_b32 v{t+9}, v{t+7}, v{t+8}")
    a(f"v_add_u32 v{VAQ}, v{t+6}, v{t+9}")
    a(f"v_xor_b32 v{VAQ+1}, 64, v{VAQ}")
    a(f"v_lshlrev_b32 v{t+8}, 13, v{t+1}")
    a(f"v_add_u32 v{VAP}, v{VAQ}, v{t+8}")
    for j in range(1, 4): a(f"v_xor_b32 v{VAP+j}, {j*32}, v{VAP}")

def xfrag_addr(a, VAX, wave_sgpr_rows, tmp):
    t = tmp
    a(f"v_and_b32 v{t}, 31, v0")
    a(f"v_lshrrev_b32 v{t+1}, 5, v0")
    a(f"v_lshrrev_b32 v{t+2}, 1, v{t}")
    a(f"v_and_b32 v{t+2}, 7, v{t+2}")
    a(f"v_xor_b32 v{t+2}, v{t+2}, v{t+1}")
    a(f"v_lshlrev_b32 v{t+2}, 4, v{t+2}")
    a(f"v_lshlrev_b32 v{t}, 7, v{t}")
    a(f"v_add_u32 v{t}, v{t}, v{t+2}")
    a(f"v_add_u32 v{VAX}, s{wave_sgpr_rows}, v{t}")
    for kl in range(1, 4): a(f"v_xor_b32 v{VAX+kl}, {kl*32}, v{VAX}")

def pass_tiles(kind, npan=1):
    if kind == 'P': return [('P', j, 0) for j in range(4)]
    return [('Q', t, p * 8192) for p in range(npan) for t in range(2)]

def stage_info(s):
    if s < 8: return item_of('W', s), 4
    if s < 12: return item_of('S', s), 8
    return item_of('S', s), 4

H_VOX0, H_VOX1, H_VO1, H_VO2, H_VO3 = 1, 2, 3, 4, 5
H_AP, H_AQ, H_AX = 6, 10, 12
H_FR = 16
H_XF = 32
H_SUM = 48
H_CS = 56
H_ONE = 60
H_T = 62
S_HW = 80
S_SO1, S_SO2, S_SO3, S_ST1, S_SOX, S_HL = 76, 77, 78, 79, 81, 82
SRD_P1, SRD_P3 = 72, 84

NI = 4
def h_setup(a):
    t = H_T
    a(f"v_lshrrev_b32 v{t}, 3, v0")
    a(f"v_and_b32 v{t+1}, 7, v0")
    a(f"v_lshrrev_b32 v{t+2}, 4, v0")
    a(f"v_xor_b32 v{t+3}, v{t+1}, v{t+2}")
    a(f"v_lshlrev_b32 v{t+3}, 4, v{t+3}")
    a(f"v_lshlrev_b32 v{t+4}, 10, v{t}")
    a(f"v_add_u32 v{H_VOX0}, v{t+4}, v{t+3}")
    a(f"v_xor_b32 v{H_VOX1}, 64, v{H_VOX0}")
    a(f"v_and_b32 v{t+2}, 1, v{t+2}")
    a(f"v_lshlrev_b32 v{t+2}, 2, v{t+2}")
    a(f"v_xor_b32 v{t+1}, v{t+1}, v{t+2}")
    a(f"v_lshlrev_b32 v{t+1}, 4, v{t+1}")
    a("s_movk_i32 s10, 3072")
    a(f"v_mul_lo_u32 v{t+2}, v{t}, s10")
    a(f"v_add_u32 v{H_VO2}, v{t+2}, v{t+1}")
    a("s_movk_i32 s10, 3584")
    a(f"v_mul_lo_u32 v{t+2}, v{t}, s10")
    a(f"s_lshr_b32 s11, s{S_HW}, 1")
    a("s_lshl_b32 s12, s11, 5")
    a(f"v_xor_b32 v{t+3}, s12, v{t+1}")
    a(f"v_add_u32 v{H_VO3}, v{t+2}, v{t+3}")
    a("s_cmp_eq_u32 s11, 0")
    a(f"s_cselect_b32 s{SRD_P3}, s{SRD_WG}, s{SRD_WU}")
    a(f"s_cselect_b32 s{SRD_P3+1}, s{SRD_WG+1}, s{SRD_WU+1}")
    a(f"s_mov_b32 s{SRD_P3+2}, {512*1792*2}")
    a(f"s_mov_b32 s{SRD_P3+3}, 0x20000")
    a(f"s_and_b32 s15, s{S_HW}, 1")
    a("s_mul_i32 s12, s15, 32*3584")
    a(f"s_lshl_b32 s14, s{S_U_LATE}, 7")
    a(f"s_add_u32 s{S_SO3}, s14, s12")
    a(f"s_lshl_b32 s10, s{S_U_Q2}, 7")
    a("s_mul_i32 s12, s15, 32*3072")
    a(f"s_add_u32 s{S_SO2}, s10, s12")
    a(f"s_lshl_b32 s10, s{S_RB}, 17")
    a(f"s_lshl_b32 s12, s{S_HW}, 15")
    a(f"s_add_u32 s{S_SOX}, s10, s12")
    a(f"s_lshl_b32 s{S_HL}, s{S_HW}, 12")
    a(f"s_cmp_eq_u32 s{S_I}, 3")
    a("s_cbranch_scc1 L_h_typeB")
    a(f"v_mov_b32 v{H_VO1}, v{H_VO3}")
    a(f"s_mov_b32 s{SRD_P1}, s{SRD_P3}")
    a(f"s_mov_b32 s{SRD_P1+1}, s{SRD_P3+1}")
    a(f"s_mov_b32 s{SRD_P1+2}, {512*1792*2}")
    a(f"s_lshl_b32 s13, s{S_U_EARLY}, 7")
    a("s_mul_i32 s12, s15, 32*3584")
    a(f"s_add_u32 s{S_SO1}, s13, s12")
    a(f"s_movk_i32 s{S_ST1}, 3584")
    a("s_branch L_h_typeDone")
    a("L_h_typeB:")
    a(f"v_mov_b32 v{H_VO1}, v{H_VO2}")
    a(f"s_mov_b32 s{SRD_P1}, s{SRD_WQKV}")
    a(f"s_mov_b32 s{SRD_P1+1}, s{SRD_WQKV+1}")
    a(f"s_mov_b32 s{SRD_P1+2}, {512*1536*2}")
    a(f"s_lshl_b32 s11, s{S_M}, 2")
    a(f"s_lshr_b32 s10, s{S_HW}, 1")
    a("s_add_u32 s10, s10, s11")
    a("s_add_u32 s10, s10, 1")
    a("s_lshl_b32 s10, s10, 7")
    a("s_mul_i32 s12, s15, 32*3072")
    a(f"s_add_u32 s{S_SO1}, s10, s12")
    a(f"s_movk_i32 s{S_ST1}, 3072")
    a("L_h_typeDone:")
    a(f"s_mov_b32 s{SRD_P1+3}, 0x20000")

def h_item(a, i):
    base = blk_addr(i)
    def chunk(c):
        a(f"s_add_u32 s11, s{S_ROT}, {c}")
        a("s_and_b32 s11, s11, 7")
    if i < 16 and i % 2 == 0:
        s = i // 2
        chunk(s)
        a("s_lshl_b32 s11, s11, 7")
        a(f"s_add_u32 s11, s11, s{S_SOX}")
        for q in range(4):
            a(f"s_add_u32 s10, s11, {q*8*1024}")
            a(f"s_add_u32 m0, s{S_HL}, {base + q*1024}")
            a(f"buffer_load_dwordx4 v{H_VOX1 if q & 1 else H_VOX0}, {srd(SRD_X)}, s10 offen lds")
    elif i < 16:
        s = i // 2
        chunk(s)
        a("s_lshl_b32 s11, s11, 6")
        a(f"s_mul_i32 s11, s11, s{S_ST1}")
        a(f"s_add_u32 s11, s11, s{S_SO1}")
        a(f"s_lshl_b32 s12, s{S_ST1}, 3")
        for q in range(4):
            a(f"s_add_u32 m0, s{S_HL}, {base + q*1024}")
            a(f"buffer_load_dwordx4 v{H_VO1}, {srd(SRD_P1)}, s11 offen lds")
            if q < 3: a("s_add_u32 s11, s11, s12")
    else:
        s = i - 16 + 8
        if s < 12:
            a(f"s_lshr_b32 s11, s{S_HW}, 1")
            a(f"s_add_u32 s11, s11, s{S_ROT}")
            a(f"s_add_u32 s11, s11, {2*(s-8)}")
            a("s_and_b32 s11, s11, 7")
            a("s_mul_i32 s11, s11, 64*3072")
            a(f"s_add_u32 s11, s11, s{S_SO2}")
            v, sr, st = H_VO2, SRD_WQKV, 3072
        else:
            chunk(s - 12)
            a("s_mul_i32 s11, s11, 64*3584")
            a(f"s_add_u32 s11, s11, s{S_SO3}")
            v, sr, st = H_VO3, SRD_P3, 3584
        for q in range(4):
            a(f"s_add_u32 s10, s11, {8*q*st}")
            a(f"s_add_u32 m0, s{S_HL}, {base + q*1024}")
            a(f"buffer_load_dwordx4 v{v}, {srd(sr)}, s10 offen lds")

class AG:
    def __init__(self, regs): self.regs = regs; self.bias = 0
    def off(self, a, base):
        w = (base // (3 * BLK)) * 3 * BLK
        if w != self.bias:
            d = w - self.bias
            for r in self.regs:
                if d > 0: a(f"v_add_u32 v{r}, {d}, v{r}")
                else: a(f"v_subrev_u32 v{r}, {-d}, v{r}")
            self.bias = w
        return base - w

H_EP = 18
H_PL = 16
H_G = 20
NBAR = 15
WS_CS = WS_CSP
def h_loader(a):
    issued = []
    def outstanding(): return sum(n for t, n in issued)
    def wait_tags(need):
        idx = [k for k, (t, n) in enumerate(issued) if t in need]
        if not idx: return
        last = max(idx)
        a(f"s_waitcnt vmcnt({sum(n for t, n in issued[last+1:])})")
        del issued[:last + 1]
    def issue(i):
        while outstanding() + NI > 60:
            wait_tags([issued[0][0]])
        h_item(a, i); issued.append((i, NI))
    h_setup(a)
    nextitem = 0
    issued.append(('touch', 2))
    while nextitem < 2: issue(nextitem); nextitem += 1
    wait_tags(['touch'])
    epoch_ready(a)
    if os.environ.get("DELAYH"):
        a(f"s_mov_b32 s15, {os.environ['DELAYH']}")
        a("L_dly:")
        a("s_sleep 8")
        a("s_sub_u32 s15, s15, 1")
        a("s_cmp_lg_u32 s15, 0")
        a("s_cbranch_scc1 L_dly")
    while nextitem < int(os.environ.get("INIT_ITEMS", "4")): issue(nextitem); nextitem += 1
    a(f"v_lshlrev_b32 v{H_T}, 2, v0")
    a(f"v_mov_b32 v{H_T+1}, 0")
    a(f"ds_write_b32 v{H_T}, v{H_T+1} offset:{LDS_CNT}")
    a(f"v_and_b32 v{H_T}, 15, v0")
    a(f"v_lshlrev_b32 v{H_T}, 2, v{H_T}")
    a(f"s_lshl_b32 s10, s{S_RB}, 7")
    a(f"s_add_u32 s10, s10, {FL_1R*128}")
    a(f"v_add_u32 v{H_T+1}, s10, v{H_T}")
    a(f"s_lshl_b32 s10, s{S_CG}, 7")
    a(f"s_add_u32 s10, s10, {FL_1C*128}")
    a(f"v_add_u32 v{H_T+2}, s10, v{H_T}")
    a("v_cmp_gt_u32 vcc, 16, v0")
    a(f"v_cndmask_b32 v{H_PL+1}, v{H_T+2}, v{H_T+1}, vcc")
    for s in range(0, NBAR):
        if s < 8: need = [item_of('X', s), item_of('W', s)]
        elif s < 14: need = [item_of('S', s)]
        else: need = [NITEMS - 1]
        wait_tags(need)
        if (STAMPS == 2 and s < 15) or (STAMPS == 1 and s in (0, 4, 8, 12)):
            stamp(a, 8 + s, H_T, H_T + 1); issued.append(('st', 2))
        if s in (0, 12): a("s_waitcnt lgkmcnt(0)")
        a("s_barrier")
        if s == 7:
            a(f"s_mov_b32 s14, {WS_FLAG}")
            a(f"buffer_load_dword v{H_PL}, v{H_PL+1}, {srd(SRD_WS)}, s14 offen sc1"); issued.append(('poll', 1))
        if s == 9:
            wait_tags(['poll'])
            a(f"s_add_u32 s13, s{S_TAG}, 1")
            a(f"v_cmp_ne_u32 vcc, s13, v{H_PL}")
            a("s_and_b64 vcc, vcc, 0xffffffff")
            a("s_cmp_eq_u64 vcc, 0")
            a("s_cbranch_scc1 L_h_pok")
            flag_wait(a, 32, 1, H_PL, H_PL + 1, "fw_prep")
            a("L_h_pok:")
            a(f"v_and_b32 v{H_T}, 31, v0")
            a(f"s_lshl_b32 s10, s{S_RB}, 7")
            a(f"s_lshl_b32 s11, s{S_HW}, 5")
            a("s_add_u32 s10, s10, s11")
            a(f"v_add_u32 v{H_T}, s10, v{H_T}")
            a(f"v_lshlrev_b32 v{H_T}, 4, v{H_T}")
            a(f"s_mov_b32 s10, {WS_STAT}")
            a(f"buffer_load_dwordx4 {vr(H_G,4)}, v{H_T}, {srd(SRD_WS)}, s10 offen sc1"); issued.append(('g', 1))
            a(f"v_lshlrev_b32 v{H_T+1}, 4, v0")
            a(f"s_mul_i32 s10, s{S_CG}, 10240")
            a(f"s_add_u32 s10, s10, {WS_CSP}")
            a(f"s_lshl_b32 s11, s{S_HW}, 10")
            a("s_add_u32 s10, s10, s11")
            for q in range(3):
                if q == 2:
                    a(f"s_cmp_lt_u32 s{S_HW}, 2")
                    a("s_cselect_b32 s11, 4096, 0")
                    a("s_add_u32 s10, s10, s11")
                elif q == 1:
                    a("s_add_u32 s10, s10, 4096")
                a(f"buffer_load_dwordx4 {vr(H_G+4+4*q,4)}, v{H_T+1}, {srd(SRD_WS)}, s10 offen sc1"); issued.append(('g', 1))
        cap = 2 * s + int(os.environ.get("LEAD_ITEMS", "8"))
        while nextitem < NITEMS and nextitem < cap and (nextitem < NBLK or item_free_after(nextitem) <= s):
            issue(nextitem); nextitem += 1
        if s == 11:
            wait_tags(['g'])
            a(f"v_and_b32 v{H_T}, 31, v0")
            a(f"s_lshl_b32 s10, s{S_HW}, 5")
            a(f"v_add_u32 v{H_T}, s10, v{H_T}")
            a(f"v_lshlrev_b32 v{H_T+1}, 4, v{H_T}")
            a(f"v_lshlrev_b32 v{H_T}, 2, v{H_T}")
            a("s_mov_b64 exec, 0xffffffff")
            a(f"ds_write_b128 v{H_T+1}, {vr(H_G,4)} offset:{LDS_ST}")
            a(f"ds_write_b32 v{H_T}, v{H_G+1} offset:{LDS_RS}")
            a("s_mov_b64 exec, -1")
            a(f"v_lshlrev_b32 v{H_T}, 4, v0")
            a(f"s_lshl_b32 s10, s{S_HW}, 10")
            a(f"v_add_u32 v{H_T}, s10, v{H_T}")
            a(f"ds_write_b128 v{H_T}, {vr(H_G+4,4)} offset:{LDS_CS}")
            a(f"ds_write_b128 v{H_T}, {vr(H_G+8,4)} offset:{LDS_CS+4096}")
            a(f"s_cmp_lt_u32 s{S_HW}, 2")
            a("s_cbranch_scc0 L_h_nog3")
            a(f"ds_write_b128 v{H_T}, {vr(H_G+12,4)} offset:{LDS_CS+8192}")
            a("L_h_nog3:")

def h_phaseA(a):
    h_loader(a)
    a.forget_waits()

VX = 128
ACCX, ACCY = 64, 32
V_AP, V_AQ, V_AX = 1, 5, 8
V_ST = 7
V_T = 12
FR0, FR1 = 16, 32

def c_setup(a):
    tile_addr_regs(a, V_AP, V_AQ, 16)
    a(f"s_lshl_b32 s10, s{S_WAVE}, 12")
    xfrag_addr(a, V_AX, 10, 16)
    a(f"v_lshlrev_b32 v{V_ST}, 4, v0")
    a.c_agw = AG(list(range(V_AP, V_AP + 4)) + [V_AQ, V_AQ + 1])
    a.c_agx = AG(list(range(V_AX, V_AX + 4)))

S_FRT, S_FCB = 86, 87
def fin_ids(a):
    a(f"s_lshl_b32 s12, s{S_XCD}, 2")
    a(f"s_and_b32 s13, s{S_J}, 3")
    a(f"s_add_u32 s{S_FRT}, s12, s13")
    a(f"s_lshr_b32 s{S_FCB}, s{S_J}, 2")

def xlane_reduce(a, A, n, T):
    for e in range(4): a(f"v_permlane32_swap_b32 v{A+e}, v{A+e+4}")
    for e in range(4): a(f"v_add_f32 v{A+e}, v{A+e}, v{A+e+4}")
    for e in range(2): a(f"v_permlane16_swap_b32 v{A+e}, v{A+e+2}")
    for e in range(2): a(f"v_add_f32 v{A+e}, v{A+e}, v{A+e+2}")

def c_prep(a):
    L = 128
    a(f"s_cmp_eq_u32 s{S_WAVE}, 0")
    a("s_cbranch_scc0 L_prep_cs")
    a("v_lshlrev_b32 v2, 4, v0")
    a(f"s_lshl_b32 s10, s{S_RB}, 17")
    a(f"s_lshl_b32 s11, s{S_CG}, 13")
    a("s_add_u32 s10, s10, s11")
    for r in range(8):
        a(f"s_add_u32 s11, s10, {r*1024}")
        a(f"buffer_load_dwordx4 {vr(L+4*r,4)}, v2, {srd(SRD_X)}, s11 offen")
    a("v_mov_b32 v3, 0x3f803f80")
    S, Q = 16, 24
    for r in range(16): a(f"v_mov_b32 v{16+r}, 0")
    for r in range(8):
        a(f"s_waitcnt vmcnt({7-r})")
        for d in range(4):
            a(f"v_dot2_f32_bf16 v{S+r}, v{L+4*r+d}, v3, v{S+r}")
            a(f"v_dot2_f32_bf16 v{Q+r}, v{L+4*r+d}, v{L+4*r+d}, v{Q+r}")
    xlane_reduce(a, S, 8, 0); xlane_reduce(a, Q, 8, 0)
    for ror in (8, 4, 2, 1):
        for R in (S, S + 1, Q, Q + 1):
            a(f"v_add_f32_dpp v{R}, v{R}, v{R} row_ror:{ror} row_mask:0xf bank_mask:0xf")
    a("v_lshrrev_b32 v4, 4, v0")
    a("v_and_b32 v5, 1, v4")
    a("v_lshlrev_b32 v5, 1, v5")
    a("v_lshrrev_b32 v4, 1, v4")
    a("v_lshlrev_b32 v4, 2, v4")
    a("v_add_u32 v4, v4, v5")
    a(f"s_lshl_b32 s10, s{S_RB}, 7")
    a(f"s_lshl_b32 s11, s{S_CG}, 3")
    a("s_add_u32 s10, s10, s11")
    a("v_add_u32 v4, s10, v4")
    a("v_lshlrev_b32 v4, 4, v4")
    a("v_and_b32 v5, 15, v0")
    a("v_cmp_eq_u32 vcc, 0, v5")
    a("s_mov_b64 s[12:13], vcc")
    for e in range(2):
        m, q = S + e, Q + e
        O = 32 + 4 * e
        a(f"v_mul_f32 v{m}, {f32bits(1/512.0):#x}, v{m}")
        a(f"v_mul_f32 v{q}, {f32bits(1/512.0):#x}, v{q}")
        a(f"v_mul_f32 v{O}, v{m}, v{m}")
        a(f"v_sub_f32 v{q}, v{q}, v{O}")
        a(f"v_max_f32 v{q}, 0, v{q}")
        a(f"v_cvt_pk_bf16_f32 v{m}, v{m}, v{m}")
        a(f"v_cvt_pk_bf16_f32 v{q}, v{q}, v{q}")
        a(f"v_lshlrev_b32 v{q}, 16, v{q}")
        a(f"v_add_f32 v{q}, {f32bits(1e-5):#x}, v{q}")
        a(f"v_cvt_pk_bf16_f32 v{q}, v{q}, v{q}")
        a(f"v_lshlrev_b32 v{q}, 16, v{q}")
        a(f"v_sqrt_f32 v{q}, v{q}")
        a(f"v_cvt_pk_bf16_f32 v{q}, v{q}, v{q}")
        a(f"v_lshlrev_b32 v{O+2}, 16, v{q}")
        a(f"v_rcp_f32 v{O+1}, v{O+2}")
        a(f"v_xor_b32 v{O}, 0x80008000, v{m}")
        a(f"v_mov_b32 v{O+3}, 0")
    a(f"s_mov_b32 s10, {WS_STAT}")
    a("s_mov_b64 exec, s[12:13]")
    a(f"buffer_store_dwordx4 v[32:35], v4, {srd(SRD_WS)}, s10 offen sc1")
    a(f"buffer_store_dwordx4 v[36:39], v4, {srd(SRD_WS)}, s10 offen offset:16 sc1")
    a("s_mov_b64 exec, -1")
    a("s_branch L_prep_done")
    a("L_prep_cs:")
    a.forget_waits()
    a(f"s_lshr_b32 s11, s{S_RB}, 3")
    a("s_mul_i32 s11, s11, 3")
    a(f"s_add_u32 s11, s11, s{S_WAVE}")
    a("s_sub_u32 s11, s11, 1")
    a("s_cmp_ge_u32 s11, 5")
    a("s_cbranch_scc1 L_prep_done")
    a(f"s_and_b32 s12, s{S_RB}, 7")
    T = 76
    a(f"s_lshl_b32 s{T}, s{S_M}, 2")
    a(f"s_add_u32 s{T}, s{T}, 1")
    a(f"s_add_u32 s{T}, s{T}, s11")
    a(f"s_lshl_b32 s{T+1}, s11, 1")
    a(f"s_cmp_eq_u32 s{S_I}, 3")
    a(f"s_cselect_b32 s{T+2}, 2, s11")
    a(f"s_cselect_b32 s{T+3}, s{T}, s{S_U_EARLY}")
    a(f"s_cselect_b32 s{T+4}, s{T+1}, 0")
    a("s_cmp_eq_u32 s11, 2")
    a(f"s_cselect_b32 s{T+2}, 2, s{T+2}")
    a(f"s_cselect_b32 s{T+3}, s{S_U_Q2}, s{T+3}")
    a(f"s_cselect_b32 s{T+4}, 4, s{T+4}")
    a(f"s_sub_u32 s{T}, s11, 3")
    a("s_cmp_ge_u32 s11, 3")
    a(f"s_cselect_b32 s{T+2}, s{T}, s{T+2}")
    a(f"s_cselect_b32 s{T+3}, s{S_U_LATE}, s{T+3}")
    a(f"s_cselect_b32 s{T+4}, 6, s{T+4}")
    a(f"s_cmp_eq_u32 s{T+2}, 0")
    a(f"s_cselect_b32 s72, s{SRD_WG}, s{SRD_WU}")
    a(f"s_cselect_b32 s73, s{SRD_WG+1}, s{SRD_WU+1}")
    a(f"s_mov_b32 s74, {512*1792*2}")
    a(f"s_movk_i32 s{T+5}, 3584")
    a(f"s_cmp_eq_u32 s{T+2}, 2")
    a(f"s_cselect_b32 s72, s{SRD_WQKV}, s72")
    a(f"s_cselect_b32 s73, s{SRD_WQKV+1}, s73")
    a(f"s_cselect_b32 s74, {512*1536*2}, s74")
    a("s_mov_b32 s75, 0x20000")
    a(f"s_cselect_b32 s{T+5}, 3072, s{T+5}")
    a(f"s_lshl_b32 s14, s{T+3}, 7")
    a(f"s_lshl_b32 s13, s12, 6")
    a(f"s_mul_i32 s13, s13, s{T+5}")
    a("s_add_u32 s14, s14, s13")
    a("v_lshrrev_b32 v2, 3, v0")
    a("v_and_b32 v3, 7, v0")
    a(f"v_mul_lo_u32 v6, v2, s{T+5}")
    a("v_lshlrev_b32 v7, 4, v3")
    a("v_add_u32 v6, v6, v7")
    a(f"s_lshl_b32 s13, s{T+5}, 3")
    for q in range(8):
        a(f"buffer_load_dwordx4 {vr(L+4*q,4)}, v6, s[72:75], s14 offen")
        if q < 7: a("s_add_u32 s14, s14, s13")
    a("v_mov_b32 v4, 0x00003f80")
    a("v_mov_b32 v5, 0x3f800000")
    A = 16
    for e in range(8): a(f"v_mov_b32 v{A+e}, 0")
    for q in range(8):
        a(f"s_waitcnt vmcnt({7-q})")
        for d in range(4):
            a(f"v_dot2_f32_bf16 v{A+2*d}, v{L+4*q+d}, v4, v{A+2*d}")
            a(f"v_dot2_f32_bf16 v{A+2*d+1}, v{L+4*q+d}, v5, v{A+2*d+1}")
    xlane_reduce(a, A, 8, 0)
    for e in range(2): a(f"v_add_f32_dpp v{A+e}, v{A+e}, v{A+e} row_ror:8 row_mask:0xf bank_mask:0xf")
    for e in range(2):
        a(f"v_cvt_pk_bf16_f32 v{A+2+e}, v{A+e}, v{A+e}")
        a(f"v_lshlrev_b32 v{A+2+e}, 16, v{A+2+e}")
        a(f"v_sub_f32 v{A+2+e}, v{A+e}, v{A+2+e}")
        a(f"v_cvt_pk_bf16_f32 v{A+e}, v{A+e}, v{A+2+e}")
    a("v_lshrrev_b32 v8, 4, v0")
    a("v_and_b32 v9, 1, v8")
    a("v_lshlrev_b32 v9, 1, v9")
    a("v_lshrrev_b32 v8, 1, v8")
    a("v_lshlrev_b32 v8, 2, v8")
    a("v_add_u32 v8, v8, v9")
    a("v_lshlrev_b32 v9, 3, v3")
    a("v_add_u32 v8, v8, v9")
    a("v_lshrrev_b32 v9, 4, v8")
    a("v_lshlrev_b32 v9, 5, v9")
    a("v_and_b32 v10, 15, v8")
    a("v_add_u32 v9, v9, v10")
    a(f"s_lshl_b32 s13, s{T+2}, 4")
    a("v_add_u32 v9, s13, v9")
    a(f"s_cmp_eq_u32 s{T+2}, 2")
    a("s_cselect_b64 vcc, -1, 0")
    a("v_cndmask_b32 v8, v9, v8, vcc")
    a("v_lshrrev_b32 v9, 5, v8")
    a(f"v_add_u32 v9, s{T+4}, v9")
    a("v_lshlrev_b32 v9, 10, v9")
    a("v_and_b32 v8, 31, v8")
    a("v_lshlrev_b32 v8, 4, v8")
    a("v_add_u32 v8, v8, v9")
    a("s_lshr_b32 s13, s12, 2")
    a("s_lshl_b32 s13, s13, 9")
    a("s_and_b32 s14, s12, 3")
    a("s_lshl_b32 s14, s14, 2")
    a("s_add_u32 s13, s13, s14")
    a(f"s_mul_i32 s14, s{S_CG}, 10240")
    a("s_add_u32 s14, s14, s13")
    a(f"s_add_u32 s14, s14, {WS_CSP}")
    a("v_and_b32 v9, 8, v0")
    a("v_cmp_eq_u32 vcc, 0, v9")
    a("s_mov_b64 s[12:13], vcc")
    a("s_mov_b64 exec, s[12:13]")
    a(f"buffer_store_dword v{A}, v8, {srd(SRD_WS)}, s14 offen sc1")
    a(f"buffer_store_dword v{A+1}, v8, {srd(SRD_WS)}, s14 offen offset:16 sc1")
    a("s_mov_b64 exec, -1")
    a("L_prep_done:")
    a.forget_waits()
    a.nop(8)

def epoch_ready(a):
    a("s_waitcnt lgkmcnt(0)")
    a(f"s_add_u32 s{S_TAG}, s32, 1")
    a(f"s_lshl_b32 s{S_TAG}, s{S_TAG}, 3")

def touch_t0(a, dst):
    a(f"s_cmp_ge_u32 s{S_WAVE}, 4")
    a("s_cbranch_scc1 L_tt_w")
    a("v_lshrrev_b32 v2, 3, v0")
    a("v_lshlrev_b32 v2, 10, v2")
    a("v_and_b32 v3, 7, v0")
    a("v_lshlrev_b32 v3, 7, v3")
    a("v_add_u32 v2, v2, v3")
    a(f"s_lshl_b32 s10, s{S_RB}, 17")
    a(f"s_lshl_b32 s11, s{S_I}, 15")
    a("s_add_u32 s10, s10, s11")
    a(f"s_lshl_b32 s11, s{S_WAVE}, 13")
    a("s_add_u32 s10, s10, s11")
    a(f"buffer_load_dword v{dst}, v2, {srd(SRD_X)}, s10 offen")
    a("s_branch L_tt_done")
    a("L_tt_w:")
    a(f"s_and_b32 s10, s{S_J}, 7")
    a("s_lshl_b32 s11, s10, 6")
    a("v_add_u32 v2, s11, v0")
    a("s_movk_i32 s12, 3584")
    a("v_mul_lo_u32 v3, v2, s12")
    a("s_movk_i32 s12, 3072")
    a("v_mul_lo_u32 v2, v2, s12")
    a(f"s_cmp_ge_u32 s{S_WAVE}, 6")
    a("s_cbranch_scc1 L_tt_w3")
    a(f"s_cmp_eq_u32 s{S_I}, 3")
    a("s_cbranch_scc1 L_tt_B")
    a(f"s_lshl_b32 s13, s{S_U_EARLY}, 7")
    a(f"s_cmp_eq_u32 s{S_WAVE}, 4")
    a("s_cbranch_scc0 L_tt_up")
    a(f"buffer_load_dword v{dst}, v3, {srd(SRD_WG)}, s13 offen")
    a("s_branch L_tt_done")
    a("L_tt_up:")
    a(f"buffer_load_dword v{dst}, v3, {srd(SRD_WU)}, s13 offen")
    a("s_branch L_tt_done")
    a("L_tt_B:")
    a(f"s_lshl_b32 s13, s{S_M}, 2")
    a(f"s_add_u32 s13, s13, s{S_WAVE}")
    a("s_sub_u32 s13, s13, 3")
    a("s_lshl_b32 s13, s13, 7")
    a(f"buffer_load_dword v{dst}, v2, {srd(SRD_WQKV)}, s13 offen")
    a("s_branch L_tt_done")
    a("s_branch L_tt_done")
    a("L_tt_w3:")
    a("s_mul_i32 s10, s2, 72")
    a(f"s_sub_u32 s11, s{S_WAVE}, 6")
    a("s_mul_i32 s11, s11, 36")
    a("s_add_u32 s10, s10, s11")
    a("s_lshl_b32 s10, s10, 7")
    a("v_lshlrev_b32 v2, 7, v0")
    a("v_add_u32 v2, s10, v2")
    a(f"v_subrev_u32 v3, {1792*1024}, v2")
    a("s_mov_b32 exec_hi, 0xf")
    a(f"buffer_load_dword v{dst}, v2, {srd(SRD_WD)}, 0 offen")
    a(f"buffer_load_dword v{dst}, v3, {srd(SRD_WO)}, 0 offen")
    a("s_mov_b64 exec, -1")
    a("L_tt_done:")

def c_touch_w3(a, q, dst):
    tag = f"tw3_{q}"
    a(f"s_cmp_eq_u32 s{S_WAVE}, 0")
    a(f"s_cbranch_scc1 L_{tag}_skip")
    a(f"s_and_b32 s10, s{S_J}, 3")
    a("s_mul_i32 s11, s10, 576")
    a(f"s_sub_u32 s12, s{S_WAVE}, 1")
    a("s_mul_i32 s12, s12, 192")
    a("s_add_u32 s11, s11, s12")
    a(f"s_add_u32 s11, s11, {64*q}")
    a(f"s_lshl_b32 s13, s{S_FCB}, 7")
    a(f"v_lshlrev_b32 v{V_T}, 10, v0")
    a("s_cmp_lt_u32 s11, 1792")
    a(f"s_cbranch_scc0 L_{tag}_wo")
    a("s_lshl_b32 s11, s11, 10")
    a("s_add_u32 s13, s13, s11")
    a(f"buffer_load_dword v{dst}, v{V_T}, {srd(SRD_WD)}, s13 offen")
    a(f"s_branch L_{tag}_skip")
    a(f"L_{tag}_wo:")
    a("s_sub_u32 s11, s11, 1792")
    a("s_lshl_b32 s11, s11, 10")
    a("s_add_u32 s13, s13, s11")
    a(f"buffer_load_dword v{dst}, v{V_T}, {srd(SRD_WO)}, s13 offen")
    a(f"L_{tag}_skip:")

class Pass:
    def __init__(self, a, tiles, swap, acc0, first_stage, nstages, kps, frsets, loadx=False):
        self.a, self.tiles, self.swap, self.acc0 = a, tiles, swap, acc0
        self.fs, self.ns, self.kps, self.frsets, self.loadx = first_stage, nstages, kps, frsets, loadx
        self.nks = nstages * kps
    def reads(self, ks, tl, withx):
        a = self.a
        if os.environ.get("NOC"): return 0
        s = self.fs + ks // self.kps; kl = ks % self.kps
        it, _ = stage_info(s)
        base = a.c_agw.off(a, blk_addr(it)) + kl * 2048
        fs = self.frsets[ks & 1]
        n = 0
        if withx and self.loadx:
            xb = a.c_agx.off(a, blk_addr(item_of('X', s)))
            a(f"ds_read_b128 {vr(VX+4*ks,4)}, v{V_AX+kl} offset:{xb}"); n += 1
        for t in tl:
            k, idx, imm = self.tiles[t]
            av = (V_AP if k == 'P' else V_AQ) + idx
            a(f"ds_read_b64_tr_b16 {vr(fs+4*t,2)}, v{av} offset:{base+imm}")
            a(f"ds_read_b64_tr_b16 {vr(fs+4*t+2,2)}, v{av} offset:{base+imm+512}")
            n += 2
        return n
    def entry(self):
        self.a("s_barrier")
        self.reads(0, range(len(self.tiles)), True)
    def body(self, first_reads_done_waited=False, pre_barrier=None, post_barrier=None, kstep_hook=None):
        a = self.a; T = len(self.tiles); NB_LAST = 14
        for ks in range(self.nks):
            nxt = ks + 1
            has_next = nxt < self.nks
            snext = self.fs + nxt // self.kps
            boundary = has_next and (nxt % self.kps == 0) and snext <= NB_LAST
            fs = self.frsets[ks & 1]
            if boundary:
                a("s_waitcnt lgkmcnt(0)")
                if pre_barrier: pre_barrier(snext)
                a("s_barrier")
                if STAMPS == 2: stamp(a, 13 + snext, 12, 13)
                if post_barrier: post_barrier(snext)
            if kstep_hook: kstep_hook(ks)
            half = (T + 1) // 2
            issued_next = 0
            for t in range(T):
                if not boundary and not (ks == 0 and first_reads_done_waited):
                    n_after = 2 * (T - 1 - t) + issued_next
                    a(f"s_waitcnt lgkmcnt({min(n_after, 15)})")
                acc = vr(self.acc0 + 16 * t, 16)
                c = acc if ks > 0 else "0"
                x = vr(VX + 4 * ks, 4); w = vr(fs + 4 * t, 4)
                if os.environ.get("NOC") or os.environ.get("NOMFMA"): pass
                elif self.swap: a(f"v_mfma_f32_32x32x16_bf16 {acc}, {x}, {w}, {c}")
                else: a(f"v_mfma_f32_32x32x16_bf16 {acc}, {w}, {x}, {c}")
                if has_next:
                    if t == 0: issued_next += self.reads(nxt, range(0, half), True)
                    elif t == 1: issued_next += self.reads(nxt, range(half, T), False)

def epi_common(a, E, tile0, ntiles):
    a(f"v_and_b32 v{V_T}, 31, v0")
    a(f"s_lshl_b32 s10, s{S_WAVE}, 5")
    a(f"v_add_u32 v{V_T+1}, s10, v{V_T}")
    a(f"v_lshlrev_b32 v{V_T+1}, 4, v{V_T+1}")
    a(f"ds_read_b128 {vr(E,4)}, v{V_T+1} offset:{LDS_ST}")
    a(f"v_lshlrev_b32 v{V_T}, 4, v0")
    a._cs_tile0 = tile0
    for t in range(min(2, ntiles)):
        a(f"ds_read_b128 {vr(E+8+4*(t&1),4)}, v{V_T} offset:{LDS_CS + (tile0+t)*1024}")
    a._cs_n = ntiles
    a(f"s_waitcnt lgkmcnt({min(2, ntiles)})")
    for r in range(4): a(f"v_mov_b32 v{E+4+r}, v{E}")

def epi_meancorr(a, E, t, acc, swap):
    nt = a._cs_n
    a(f"s_waitcnt lgkmcnt({1 if t + 1 < nt else 0})")
    A = vr(acc, 16); F = vr(E + 8 + 4 * (t & 1), 4)
    if swap: a(f"v_mfma_f32_32x32x16_bf16 {A}, {vr(E+4,4)}, {F}, {A}")
    else: a(f"v_mfma_f32_32x32x16_bf16 {A}, {F}, {vr(E+4,4)}, {A}")
    if t + 2 < nt:
        a(f"ds_read_b128 {F}, v{V_T} offset:{LDS_CS + (a._cs_tile0+t+2)*1024}")

def epi_pair_unit(a, acc, unit_sgpr, tile0, E):
    epi_common(a, E, tile0, 4)
    for t in range(4): epi_meancorr(a, E, t, acc + 16 * t, False)
    a(f"v_mul_f32 v{E+3}, {f32bits(-LOG2E):#x}, v{E+1}")
    a(f"s_lshl_b32 s13, s{S_RB}, 2")
    a(f"s_add_u32 s13, s13, s{S_WAVE}")
    a(f"s_mul_i32 s13, s13, {ACT_RT}")
    a(f"s_lshl_b32 s14, s{unit_sgpr}, 12")
    a("s_add_u32 s13, s13, s14")
    a(f"s_add_u32 s13, s13, {WS_ACT}")
    for j in range(4):
        A = acc + 16 * j
        for r in range(8): a(f"v_mul_f32 v{A+r}, v{A+r}, v{E+3}")
        for r in range(8): a(f"v_exp_f32 v{A+r}, v{A+r}")
        for r in range(8): a(f"v_fma_f32 v{A+r}, v{A+r}, v{E+2}, v{E+2}")
        for r in range(8): a(f"v_rcp_f32 v{A+r}, v{A+r}")
        for r in range(8): a(f"v_mul_f32 v{A+r}, v{A+r}, v{A+8+r}")
        for r in range(4): a(f"v_cvt_pk_bf16_f32 v{A+8+r}, v{A+2*r}, v{A+2*r+1}")
        a(f"buffer_store_dwordx4 {vr(A+8,4)}, v{V_ST}, {srd(SRD_WS)}, s13 offen offset:{j*1024} sc1")

def qk_lane_off(a, dst):
    a(f"v_and_b32 v{dst}, 31, v0")
    a(f"v_lshlrev_b32 v{dst}, 5, v{dst}")
    a(f"v_lshrrev_b32 v{V_T}, 5, v0")
    a(f"v_lshlrev_b32 v{V_T}, 4, v{V_T}")
    a(f"v_add_u32 v{dst}, v{dst}, v{V_T}")

def epi_n_units(a, acc, unit_sgprs, tile0, E):
    nt = 2 * len(unit_sgprs)
    epi_common(a, E, tile0, nt)
    for t in range(nt): epi_meancorr(a, E, t, acc + 16 * t, False)
    qk_lane_off(a, V_T + 2)
    for ui, us in enumerate(unit_sgprs):
        a(f"s_mov_b32 s12, {f32bits(QSCALE):#x}")
        a(f"s_cmp_lt_u32 s{us}, 8")
        a("s_cselect_b32 s12, s12, 1.0")
        a(f"v_mul_f32 v{E+3}, s12, v{E+1}")
        a(f"s_lshl_b32 s13, s{us}, 18")
        a(f"s_lshl_b32 s14, s{S_RB}, 12")
        a("s_add_u32 s13, s13, s14")
        a(f"s_lshl_b32 s14, s{S_WAVE}, 10")
        a("s_add_u32 s13, s13, s14")
        for t in range(2):
            A = acc + 16 * (2 * ui + t)
            for r in range(16): a(f"v_mul_f32 v{A+r}, v{A+r}, v{E+3}")
            for r in range(8): a(f"v_cvt_pk_bf16_f32 v{A+r}, v{A+2*r}, v{A+2*r+1}")
            a(f"buffer_store_dwordx4 {vr(A,4)}, v{V_T+2}, {srd(SRD_WS)}, s13 offen sc1")
            a("s_add_u32 s13, s13, 65536")
            a(f"buffer_store_dwordx4 {vr(A+4,4)}, v{V_T+2}, {srd(SRD_WS)}, s13 offen sc1")
            a("s_add_u32 s13, s13, 65536")

def epi_v_unit(a, acc, unit_sgpr, tile0, E):
    epi_common(a, E, tile0, 2)
    for t in range(2): epi_meancorr(a, E, t, acc + 16 * t, True)
    a(f"v_lshrrev_b32 v{V_T}, 5, v0")
    a(f"v_lshlrev_b32 v{V_T}, 4, v{V_T}")
    a(f"s_lshl_b32 s10, s{S_WAVE}, 7")
    a(f"v_add_u32 v{V_T}, s10, v{V_T}")
    R = ACCX
    for q in range(4): a(f"ds_read_b128 {vr(R+4*q,4)}, v{V_T} offset:{LDS_RS + q*32}")
    a(f"v_and_b32 v{V_T+2}, 15, v0")
    a(f"v_lshlrev_b32 v{V_T+2}, 5, v{V_T+2}")
    a(f"v_lshrrev_b32 v{V_T+3}, 5, v0")
    a(f"v_lshlrev_b32 v{V_T+3}, 4, v{V_T+3}")
    a(f"v_add_u32 v{V_T+2}, v{V_T+2}, v{V_T+3}")
    a(f"v_lshrrev_b32 v{V_T+3}, 4, v0")
    a(f"v_and_b32 v{V_T+3}, 1, v{V_T+3}")
    a(f"v_lshlrev_b32 v{V_T+3}, 16, v{V_T+3}")
    a(f"v_add_u32 v{V_T+2}, v{V_T+2}, v{V_T+3}")
    a(f"s_lshl_b32 s13, s{unit_sgpr}, 18")
    a(f"s_lshl_b32 s14, s{S_RB}, 12")
    a("s_add_u32 s13, s13, s14")
    a(f"s_lshl_b32 s14, s{S_WAVE}, 10")
    a("s_add_u32 s13, s13, s14")
    a("s_waitcnt lgkmcnt(0)")
    for t in range(2):
        A = acc + 16 * t
        for r in range(16): a(f"v_mul_f32 v{A+r}, v{A+r}, v{R+r}")
        for r in range(8): a(f"v_cvt_pk_bf16_f32 v{A+r}, v{A+2*r}, v{A+2*r+1}")
        a(f"buffer_store_dwordx4 {vr(A,4)}, v{V_T+2}, {srd(SRD_WS)}, s13 offen sc1")
        a(f"buffer_store_dwordx4 {vr(A+4,4)}, v{V_T+2}, {srd(SRD_WS)}, s13 offen offset:512 sc1")
        a("s_add_u32 s13, s13, 131072")

def c_phaseA(a):
    fin_ids(a)
    if not os.environ.get("NOPREP"): c_prep(a)
    epoch_ready(a)
    c_setup(a)
    stamp(a, 1, 12, 13)
    P3 = Pass(a, pass_tiles('P'), False, ACCX, 12, 8, 4, (FR0, FR1))
    def pre1(sn):
        if sn == 4: a("s_waitcnt vmcnt(0)")
    def post1(sn):
        if sn == 4:
            a(f"s_cmp_eq_u32 s{S_WAVE}, 3")
            a("s_cbranch_scc0 L_tw3_ep")
            a(f"v_mov_b32 v{V_T}, 0")
            a("v_mov_b32 v49, 1")
            a("s_mov_b64 exec, 1")
            a(f"buffer_atomic_add v49, v{V_T}, {srd(SRD_DBG)}, 0 offen sc0 sc1")
            a("s_mov_b64 exec, -1")
            a("L_tw3_ep:")
        if sn == 4:
            a(f"s_cmp_eq_u32 s{S_WAVE}, 0")
            a("s_cbranch_scc0 L_tw3_f1")
            flag_set(a, 1, V_T, V_T + 1)
            a("L_tw3_f1:")

    a(f"s_cmp_eq_u32 s{S_I}, 3")
    a("s_cbranch_scc1 L_c_p1B")
    st = (a.c_agw.bias, a.c_agx.bias)
    import re
    for var in ('A', 'B'):
        if var == 'B':
            a()if False else None
            a("L_c_p1B:"); a.forget_waits(); a.c_agw.bias, a.c_agx.bias = st
        n0 = len(a.lines)
        P1 = Pass(a, pass_tiles('P') if var == 'A' else pass_tiles('Q', 2), False, ACCX, 0, 8, 4, (FR0, FR1), loadx=True)
        P1.entry()
        P1.body(pre_barrier=lambda sn: (pre1(sn), post1(sn - 1)))
        for k in range(n0, len(a.lines)): a.lines[k] = re.sub(r"L_tw3_(\w+)", lambda m: f"L_tw3{var}_{m.group(1)}", a.lines[k])
        if var == 'A': a("s_branch L_c_p1done")
    a("L_c_p1done:")
    stamp(a, 2, 12, 13)
    a("s_waitcnt vmcnt(0)")
    a(f"s_cmp_eq_u32 s{S_WAVE}, 3")
    a("s_cbranch_scc0 L_c_noep2")
    a("v_readfirstlane_b32 s10, v49")
    a("s_cmp_eq_u32 s10, 255")
    a("s_cbranch_scc0 L_c_noep2")
    a("s_add_u32 s10, s32, 1")
    a(f"v_mov_b32 v{V_T}, s10")
    a(f"v_mov_b32 v{V_T+1}, {WS_FLAG + FL_EPOCH*128}")
    a("s_mov_b64 exec, 1")
    a(f"buffer_store_dword v{V_T}, v{V_T+1}, {srd(SRD_WS)}, 0 offen sc1")
    a("s_mov_b64 exec, -1")
    a("L_c_noep2:")
    a("s_barrier")
    def post2(sn):
        if sn in (9, 10, 11) and os.environ.get("W3T"): c_touch_w3(a, sn - 9, 8)
    a(f"s_cmp_lt_u32 s{S_I}, 2")
    a("s_cbranch_scc1 L_c_p2V")
    st = (a.c_agw.bias, a.c_agx.bias)
    for var in ('N', 'V'):
        if var == 'V':
            a("L_c_p2V:"); a.forget_waits(); a.c_agw.bias, a.c_agx.bias = st
        n0 = len(a.lines)
        P2 = Pass(a, pass_tiles('Q', 1), var == 'V', ACCY, 8, 4, 8, (FR0, FR0 + 8))
        P2.reads(0, range(2), False)
        P2.body(pre_barrier=lambda sn: post2(sn))
        for k in range(n0, len(a.lines)): a.lines[k] = re.sub(r"L_tw3_(\w+)", lambda m: f"L_tw3{var}_{m.group(1)}", a.lines[k])
        if var == 'N': a("s_branch L_c_p2done")
    a("L_c_p2done:")
    stamp(a, 4, 12, 13)
    a("s_barrier")
    a(f"s_cmp_eq_u32 s{S_I}, 3")
    a("s_cbranch_scc1 L_c_e1B")
    epi_pair_unit(a, ACCX, S_U_EARLY, 0, FR0)
    a("s_branch L_c_e1done")
    a("L_c_e1B:")
    a(f"s_lshl_b32 s93, s{S_M}, 2")
    a("s_add_u32 s93, s93, 1")
    a("s_add_u32 s94, s93, 1")
    epi_n_units(a, ACCX, [93, 94], 0, FR0)
    a("L_c_e1done:")
    a.nop(16)
    stamp(a, 3, 12, 13)
    a(f"s_cmp_lt_u32 s{S_I}, 2")
    a("s_cbranch_scc1 L_c_e2V")
    epi_n_units(a, ACCY, [S_U_Q2], 4, FR0)
    a("s_branch L_c_e2done")
    a("L_c_e2V:")
    epi_v_unit(a, ACCY, S_U_Q2, 4, FR0)
    a("L_c_e2done:")
    a.nop(16)
    stamp(a, 5, 12, 13)
    P3.reads(0, range(4), False)
    F2K = int(os.environ.get("F2K", "0"))
    def pre3(snext):
        if snext == 14 and not F2K: a("s_waitcnt vmcnt(0)")
    def post3(snext):
        if snext == 14 and not F2K:
            a(f"s_cmp_eq_u32 s{S_WAVE}, 0")
            a("s_cbranch_scc0 L_c_nof2")
            flag_set(a, 2, V_T, V_T + 1)
            a("L_c_nof2:")
    def mid3(ks):
        if F2K and ks == F2K:
            a("s_waitcnt vmcnt(0)")
            lds_arrive_last(a, LDS_CNT + 48, V_T, V_T + 1, "c_f2")
            flag_set(a, 2, V_T, V_T + 1)
            a("L_c_f2_skip:")
    P3.body(pre_barrier=pre3, post_barrier=post3, kstep_hook=mid3)
    stamp(a, 6, 12, 13)
def flag_store(a, line_sgpr_expr, stage, t0, t1):
    a(f"s_add_u32 s11, s{S_TAG}, {stage}")
    a(f"v_mov_b32 v{t0}, s11")
    a(f"v_mov_b32 v{t1}, s10")
    a(f"s_mov_b32 s11, {WS_FLAG}")
    a("s_mov_b64 exec, 1")
    a(f"buffer_store_dword v{t0}, v{t1}, {srd(SRD_WS)}, s11 offen sc1")
    a("s_mov_b64 exec, -1")

def flag_set(a, stage, t0, t1):
    if stage == 1:
        a(f"s_lshl_b32 s10, s{S_RB}, 7")
        a(f"s_lshl_b32 s12, s{S_CG}, 2")
        a("s_add_u32 s10, s10, s12")
        a(f"s_add_u32 s10, s10, {FL_1R*128}")
        flag_store(a, None, 1, t0, t1)
        a(f"s_lshl_b32 s10, s{S_CG}, 7")
        a(f"s_lshl_b32 s12, s{S_RB}, 2")
        a("s_add_u32 s10, s10, s12")
        a(f"s_add_u32 s10, s10, {FL_1C*128}")
        flag_store(a, None, 1, t0, t1)
    elif stage in (2, 3):
        a(f"s_lshl_b32 s10, s{S_RB}, 7")
        a(f"s_lshl_b32 s12, s{S_CG}, 2")
        a("s_add_u32 s10, s10, s12")
        a(f"s_add_u32 s10, s10, {(FL_2 if stage == 2 else FL_3)*128}")
        flag_store(a, None, stage, t0, t1)
    else:
        a(f"s_lshr_b32 s10, s{S_RB}, 1")
        a("s_lshl_b32 s10, s10, 7")
        a(f"s_and_b32 s12, s{S_RB}, 1")
        a("s_lshl_b32 s12, s12, 4")
        a(f"s_add_u32 s12, s12, s{S_CG}")
        a("s_lshl_b32 s12, s12, 2")
        a("s_add_u32 s10, s10, s12")
        a(f"s_add_u32 s10, s10, {FL_4*128}")
        flag_store(a, None, 4, t0, t1)

def flag_wait(a, nlanes, stage, t0, voff, tag, sleep=int(os.environ.get('FSLEEP', '4'))):
    if NOFLAG: return
    a(f"s_add_u32 s13, s{S_TAG}, {stage}")
    a(f"s_mov_b32 s14, {WS_FLAG}")
    a("s_mov_b32 s15, 0")
    a(f"L_{tag}:")
    a("s_add_u32 s15, s15, 1")
    a("s_cmp_gt_u32 s15, 100000")
    a(f"s_cbranch_scc1 L_{tag}_ok")
    a(f"buffer_load_dword v{t0}, v{voff}, {srd(SRD_WS)}, s14 offen sc1")
    a("s_waitcnt vmcnt(0)")
    a(f"v_cmp_ne_u32 vcc, s13, v{t0}")
    if nlanes < 64:
        if nlanes <= 32: a(f"s_and_b64 vcc, vcc, {(1 << nlanes) - 1:#x}")
    a("s_cmp_eq_u64 vcc, 0")
    a(f"s_cbranch_scc1 L_{tag}_ok")
    a(f"s_sleep {sleep}")
    a(f"s_branch L_{tag}")
    a(f"L_{tag}_ok:")

def wg_wait(a, poller_cond_sgpr, poller_val, setup_voff, nlanes, stage, cnt_off, t0, t1, tag):
    a(f"s_cmp_eq_u32 s{poller_cond_sgpr}, {poller_val}")
    a(f"s_cbranch_scc0 L_{tag}_np")
    setup_voff(t1)
    flag_wait(a, nlanes, stage, t0, t1, tag)
    lds_inc(a, cnt_off, t0, t1)
    a(f"s_branch L_{tag}_dn")
    a(f"L_{tag}_np:")
    lds_wait_count(a, cnt_off, 1, t0, t1, tag + "_l")
    a(f"L_{tag}_dn:")

def lds_arrive_last(a, cnt_off, t0, t1, tag, n=4):
    a(f"v_mov_b32 v{t0}, {cnt_off}")
    a(f"v_mov_b32 v{t1}, 1")
    a("s_mov_b64 exec, 1")
    a(f"ds_add_rtn_u32 v{t1}, v{t0}, v{t1}")
    a("s_waitcnt lgkmcnt(0)")
    a("s_mov_b64 exec, -1")
    a(f"v_readfirstlane_b32 s10, v{t1}")
    a(f"s_cmp_eq_u32 s10, {n-1}")
    a(f"s_cbranch_scc0 L_{tag}_skip")

def lds_inc(a, cnt_off, t0, t1):
    a(f"v_mov_b32 v{t0}, {cnt_off}")
    a(f"v_mov_b32 v{t1}, 1")
    a("s_mov_b64 exec, 1")
    a(f"ds_add_u32 v{t0}, v{t1}")
    a("s_mov_b64 exec, -1")

def lds_wait_count(a, cnt_off, n, t0, t1, tag):
    a(f"v_mov_b32 v{t0}, {cnt_off}")
    a("s_mov_b32 s15, 0")
    a(f"L_{tag}:")
    a("s_add_u32 s15, s15, 1")
    a("s_cmp_gt_u32 s15, 1000000")
    a(f"s_cbranch_scc1 L_{tag}_ok")
    a(f"ds_read_b32 v{t1}, v{t0}")
    a("s_waitcnt lgkmcnt(0)")
    a(f"v_readfirstlane_b32 s10, v{t1}")
    a(f"s_cmp_ge_u32 s10, {n}")
    a(f"s_cbranch_scc1 L_{tag}_ok")
    a("s_sleep 1")
    a(f"s_branch L_{tag}")
    a(f"L_{tag}_ok:")

AT_Q, AT_K, AT_V, AT_S, AT_O, AT_NM, AT_BD, AT_BO, AT_P, AT_T = 8, 16, 52, 124, 172, 188, 204, 220, 236, 2
S_QB0, S_HEAD = 93, 94
BIG = 1.0e30

def at_setup(a):
    a(f"s_and_b32 s10, s{S_RB}, 1")
    a("s_lshl_b32 s10, s10, 4")
    a(f"s_add_u32 s{S_HEAD}, s10, s{S_CG}")
    a(f"s_lshr_b32 s10, s{S_RB}, 1")
    a("s_lshl_b32 s10, s10, 3")
    a(f"s_lshl_b32 s11, s{S_HW}, 1")
    a(f"s_add_u32 s{S_QB0}, s10, s11")
    a("v_and_b32 v2, 31, v0")
    a("v_lshrrev_b32 v4, 5, v0")
    a("v_lshlrev_b32 v5, 4, v4")
    a("v_lshlrev_b32 v3, 5, v2")
    a("v_add_u32 v1, v3, v5")
    a("v_lshlrev_b32 v4, 2, v4")
    a("v_sub_u32 v4, v2, v4")
    a(f"v_mov_b32 v5, {f32bits(-BIG):#x}")
    for r in range(16):
        kr = (r & 3) + 8 * (r >> 2)
        a(f"v_cmp_le_i32 vcc, {kr}, v4")
        a(f"v_cndmask_b32_e64 v{AT_BD+r}, v5, 0, vcc")
        a(f"v_cndmask_b32_e64 v{AT_BO+r}, 0, v5, vcc")
    for r in range(72): a(f"v_mov_b32 v{AT_V+r}, 0x3f803f80")
    a("s_mov_b32 s96, 0x0000ffff")
    a("s_mov_b32 s97, 0x0000ffff")

def at_load_kv(a, slot, j, what="kv"):
    a(f"s_add_i32 s10, s{S_QB0}, {j-8}")
    a("s_max_i32 s10, s10, 0")
    a("s_lshl_b32 s10, s10, 10")
    a(f"s_lshl_b32 s11, s{S_HEAD}, 16")
    a("s_add_u32 s10, s10, s11")
    if "k" in what:
        a(f"s_add_u32 s11, s10, {WS_K}")
        a(f"buffer_load_dwordx4 {vr(AT_K+4*slot,4)}, v1, {srd(SRD_WS)}, s11 offen sc1")
    if "v" in what:
        a(f"s_add_u32 s11, s10, {WS_V}")
        a("s_mov_b64 exec, s[96:97]")
        a(f"buffer_load_dwordx4 {vr(AT_V+8*slot,4)}, v1, {srd(SRD_WS)}, s11 offen sc1")
        a(f"buffer_load_dwordx4 {vr(AT_V+8*slot+4,4)}, v1, {srd(SRD_WS)}, s11 offen offset:512 sc1")
        a("s_mov_b64 exec, -1")

def at_loads(a):
    a(f"s_lshl_b32 s11, s{S_HEAD}, 16")
    a(f"s_lshl_b32 s10, s{S_QB0}, 10")
    a("s_add_u32 s12, s10, s11")
    a(f"buffer_load_dwordx4 {vr(AT_Q,4)}, v1, {srd(SRD_WS)}, s12 offen sc1")
    for j in range(9): at_load_kv(a, j, j, "k")
    for j in range(9): at_load_kv(a, j, j, "v")
    a(f"buffer_load_dwordx4 {vr(AT_Q+4,4)}, v1, {srd(SRD_WS)}, s12 offen offset:1024 sc1")

def at_item(a, it, fast, tag, mid=None, dry=False):
    q = vr(AT_Q + 4 * it, 4)
    slot = lambda j: (j + it) % 9
    K = lambda j: vr(AT_K + 4 * slot(j), 4)
    V1 = lambda j: vr(AT_V + 8 * slot(j), 4)
    V2 = lambda j: vr(AT_V + 8 * slot(j) + 4, 4)
    S = lambda b: AT_S + 16 * b
    M = AT_T
    if not fast:
        a(f"s_add_u32 s10, s{S_QB0}, {it}")
        a("s_sub_i32 s95, 8, s10")
        a("s_max_i32 s95, s95, 0")
    a(f"v_mov_b32 v{M}, {f32bits(-BIG):#x}")
    cop = lambda j: vr(AT_BO, 16) if j == 0 else (vr(AT_BD, 16) if j == 8 else "0")
    for qq in range(1, 4): a(f"v_mov_b32 v{M+qq}, {f32bits(-BIG):#x}")
    def maxops(b):
        for r in range(0, 16, 2):
            mm = M + ((r // 2) & 3)
            a(f"v_max3_f32 v{mm}, v{S(b)+r}, v{S(b)+r+1}, v{mm}")
    if fast:
        a(f"s_add_u32 s10, s{S_QB0}, {it}")
        a("s_sub_i32 s95, 8, s10")
        a("s_max_i32 s95, s95, 0")
        a("s_cmp_eq_u32 s95, 0")
        a(f"s_cbranch_scc0 L_{tag}_d1")
        a(f"v_mfma_f32_32x32x16_bf16 {vr(S(0),16)}, {K(0)}, {q}, {cop(0)}")
        a(f"v_mfma_f32_32x32x16_bf16 {vr(S(1),16)}, {K(1)}, {q}, {cop(1)}")
        for j in range(9):
            a(f"L_{tag}_e1_{j}:")
            if j + 2 == 8 and it == 1: a("s_waitcnt vmcnt(3)")
            if j + 2 < 9: a(f"v_mfma_f32_32x32x16_bf16 {vr(S((j+2)%3),16)}, {K(j+2)}, {q}, {cop(j+2)}")
            maxops(j % 3)
        stubs1 = True
    else:
        for j in range(9):
            a(f"s_cmp_gt_i32 s95, {j}")
            a(f"s_cbranch_scc1 L_{tag}_p1_{j}")
            a(f"v_mfma_f32_32x32x16_bf16 {vr(S(0),16)}, {K(j)}, {q}, {cop(j)}")
            maxops(0)
            a(f"L_{tag}_p1_{j}:")
            a.nop(8)
    if mid: mid()
    a(f"v_max_f32 v{M}, v{M}, v{M+1}")
    a(f"v_max_f32 v{M+2}, v{M+2}, v{M+3}")
    a(f"v_max_f32 v{M}, v{M}, v{M+2}")
    a(f"v_mov_b32 v{M+1}, v{M}")
    a(f"v_permlane32_swap_b32 v{M}, v{M+1}")
    a(f"v_max_f32 v{M}, v{M}, v{M+1}")
    a(f"v_sub_f32 v{M}, 0, v{M}")
    for r in range(16): a(f"v_mov_b32 v{AT_NM+r}, v{M}")
    def qk(j, b):
        if j == 0 or j == 8:
            bias = AT_BO if j == 0 else AT_BD
            for r in range(16): a(f"v_add_f32 v{S(b)+r}, v{bias+r}, v{M}")
            a(f"v_mfma_f32_32x32x16_bf16 {vr(S(b),16)}, {K(j)}, {q}, {vr(S(b),16)}")
        else:
            a(f"v_mfma_f32_32x32x16_bf16 {vr(S(b),16)}, {K(j)}, {q}, {vr(AT_NM,16)}")
    def soft(j, b, pb):
        for r in range(16): a(f"v_exp_f32 v{S(b)+r}, v{S(b)+r}")
        for r in range(8): a(f"v_cvt_pk_bf16_f32 v{AT_P+8*pb+r}, v{S(b)+2*r}, v{S(b)+2*r+1}")
    def pv(j, pb, first):
        c = "0" if first else vr(AT_O, 16)
        a(f"v_mfma_f32_32x32x16_bf16 {vr(AT_O,16)}, {V1(j)}, {vr(AT_P+8*pb,4)}, {c}")
        a(f"v_mfma_f32_32x32x16_bf16 {vr(AT_O,16)}, {V2(j)}, {vr(AT_P+8*pb+4,4)}, {vr(AT_O,16)}")
    if fast:
        for r in range(16): a(f"v_mov_b32 v{AT_O+r}, 0")
        for r in range(16): a(f"v_mov_b32 v{AT_P+r}, 0")
        a("s_cmp_eq_u32 s95, 0")
        a(f"s_cbranch_scc0 L_{tag}_d2")
        qk(0, 0); qk(1, 1)
        for j in range(9):
            a(f"L_{tag}_e2_{j}:")
            if j == 8 and it == 0:
                at_load_kv(a, 0, 9)
            b = j % 3; pb = j & 1
            for r in range(16):
                a(f"v_exp_f32 v{S(b)+r}, v{S(b)+r}")
                if r == 3 and j > 0:
                    a(f"v_mfma_f32_32x32x16_bf16 {vr(AT_O,16)}, {V1(j-1)}, {vr(AT_P+8*(1-pb),4)}, {vr(AT_O,16)}")
                if r == 8 and j > 0:
                    a(f"v_mfma_f32_32x32x16_bf16 {vr(AT_O,16)}, {V2(j-1)}, {vr(AT_P+8*(1-pb)+4,4)}, {vr(AT_O,16)}")
                if r == 13 and j + 2 < 9 and j + 2 != 8:
                    qk(j + 2, (j + 2) % 3)
            for r in range(8): a(f"v_cvt_pk_bf16_f32 v{AT_P+8*pb+r}, v{S(b)+2*r}, v{S(b)+2*r+1}")
            if j + 2 == 8: qk(8, 8 % 3)
        pv(8, 8 & 1, False)
    else:
        for r in range(16): a(f"v_mov_b32 v{AT_O+r}, 0")
        for j in range(9):
            a(f"s_cmp_gt_i32 s95, {j}")
            a(f"s_cbranch_scc1 L_{tag}_p2_{j}")
            qk(j, 0); soft(j, 0, 0); pv(j, 0, False)
            a(f"L_{tag}_p2_{j}:")
            a.nop(16)
    a(f"v_rcp_f32 v{M}, v{AT_O+8}")
    for r in range(8): a(f"v_mul_f32 v{AT_O+r}, v{AT_O+r}, v{M}")
    for r in range(4): a(f"v_cvt_pk_bf16_f32 v{AT_P+r}, v{AT_O+2*r}, v{AT_O+2*r+1}")
    if not fast: at_store(a, it)
    if fast:
        a(f"s_branch L_{tag}_end")
        save = (dict(a.mfma_w), dict(a.valu_w))
        a(f"L_{tag}_d1:")
        if it == 1: a("s_waitcnt vmcnt(3)")
        for jj in range(1, 9):
            a(f"s_cmp_eq_u32 s95, {jj}")
            a(f"s_cbranch_scc1 L_{tag}_s1_{jj}")
        for jj in range(1, 9):
            a(f"L_{tag}_s1_{jj}:")
            a(f"v_mfma_f32_32x32x16_bf16 {vr(S(jj%3),16)}, {K(jj)}, {q}, {cop(jj)}")
            if jj + 1 < 9: a(f"v_mfma_f32_32x32x16_bf16 {vr(S((jj+1)%3),16)}, {K(jj+1)}, {q}, {cop(jj+1)}")
            a.nop(16)
            a(f"s_branch L_{tag}_e1_{jj}")
        a(f"L_{tag}_d2:")
        for jj in range(1, 9):
            a(f"s_cmp_eq_u32 s95, {jj}")
            a(f"s_cbranch_scc1 L_{tag}_s2_{jj}")
        for jj in range(1, 9):
            a(f"L_{tag}_s2_{jj}:")
            a.nop(8)
            qk(jj, jj % 3)
            if jj + 1 < 9: qk(jj + 1, (jj + 1) % 3)
            a.nop(16)
            a(f"s_branch L_{tag}_e2_{jj}")
        a(f"L_{tag}_end:")
        a.nop(4)

def at_store(a, it):
    M = AT_T
    a(f"s_add_u32 s10, s{S_QB0}, {it}")
    a(f"s_mul_i32 s10, s10, {ACT_RT}")
    a(f"s_add_u32 s11, s{S_HEAD}, 112")
    a("s_lshl_b32 s11, s11, 10")
    a("s_add_u32 s10, s10, s11")
    a(f"s_add_u32 s10, s10, {WS_ACT}")
    a(f"v_lshlrev_b32 v{M+1}, 4, v0")
    a(f"buffer_store_dwordx4 {vr(AT_P,4)}, v{M+1}, {srd(SRD_WS)}, s10 offen sc1")

S_IT = 89
def attention(a):
    if os.environ.get("PRIO_AT"): a(f"s_setprio {os.environ['PRIO_AT']}")
    at_setup(a)
    def voff_at(t1):
        a(f"s_and_b32 s10, s{S_RB}, 0xfffffffe")
        a("s_sub_i32 s10, s10, 2")
        a("s_max_i32 s10, s10, 0")
        a(f"s_add_u32 s10, s10, {FL_2}")
        a("s_lshl_b32 s10, s10, 7")
        a(f"v_lshrrev_b32 v{t1}, 4, v0")
        a(f"v_lshlrev_b32 v{t1}, 7, v{t1}")
        a("v_and_b32 v6, 15, v0")
        a("v_lshlrev_b32 v6, 2, v6")
        a(f"v_add_u32 v{t1}, v{t1}, v6")
        a(f"v_add_u32 v{t1}, s10, v{t1}")
    a("L_at_dry_ret:")
    a.forget_waits()
    a.nop(16)
    wg_wait(a, S_HW, 2, voff_at, 64, 2, LDS_CNT + 28, 6, 7, "fw_at")
    stamp(a, 2, 6, 7)
    lstamp(a, 5)
    at_loads(a)
    lds_inc(a, LDS_CNT + 52, 6, 7)
    lstamp(a, 6)
    a("s_waitcnt vmcnt(19)")
    lstamp(a, 7)
    at_item(a, 0, True, "f0", mid=lambda: a("s_waitcnt vmcnt(0)"))
    at_store(a, 0)
    lstamp(a, 10)
    a.vm = [x for x in a.vm if False]
    at_item(a, 1, True, "f1", mid=lambda: a("s_waitcnt vmcnt(1)"))
    at_store(a, 1)
    a("L_at_done:")
    lstamp(a, 12)
    stamp(a, 4, 6, 7)
    a("s_waitcnt vmcnt(0)")
    lstamp(a, 13)
    lds_arrive_last(a, LDS_CNT + 4, 6, 7, "at_fl")
    flag_set(a, 4, 6, 7)
    a("L_at_fl_skip:")

FD = 12
F_ACC = 64
F_ACT = 128
F_W = 224
F_AW, F_VW, F_VA, F_T = 240, 242, 243, 244
F_RING = 24 * 1024
S_FL, S_ACTH, S_ACTO, S_WDO, S_WOO = 88, 84, 85, 82, 83

def f_ksteps():
    L = []
    for u in (0, 2, 4, 1, 3, 5, 6):
        for jj in range(4): L.append((0, 4 * u + jj))
    for hd in range(8): L.append((1, hd))
    return L

def f_setup(a):
    KQ = S_WAVE
    a(f"s_mul_i32 s{S_FL}, s{KQ}, {F_RING}")
    a(f"s_add_u32 s{S_FL}, s{S_FL}, {BLK}")
    a(f"s_mul_i32 s89, s{S_FRT}, {2*ACT_RT}")
    a(f"s_add_u32 s89, s89, {WS_ACT}")
    a(f"s_mul_i32 s10, s{KQ}, {28*1024}")
    a(f"s_add_u32 s{S_ACTH}, s89, s10")
    a(f"s_lshl_b32 s10, s{KQ}, 13")
    a(f"s_add_u32 s{S_ACTO}, s89, s10")
    a(f"s_add_u32 s{S_ACTO}, s{S_ACTO}, {112*1024}")
    a(f"s_lshl_b32 s11, s{S_FCB}, 7")
    a(f"s_mul_i32 s10, s{KQ}, {448*1024}")
    a(f"s_add_u32 s{S_WDO}, s10, s11")
    a(f"s_lshl_b32 s10, s{KQ}, 17")
    a(f"s_add_u32 s{S_WOO}, s10, s11")
    t = F_ACT
    a(f"v_lshrrev_b32 v{t}, 3, v0")
    a(f"v_lshlrev_b32 v{t}, 10, v{t}")
    a(f"v_and_b32 v{t+1}, 7, v0")
    a(f"v_lshrrev_b32 v{t+2}, 4, v0")
    a(f"v_and_b32 v{t+2}, 1, v{t+2}")
    a(f"v_lshlrev_b32 v{t+2}, 2, v{t+2}")
    a(f"v_xor_b32 v{t+1}, v{t+1}, v{t+2}")
    a(f"v_lshlrev_b32 v{t+1}, 4, v{t+1}")
    a(f"v_add_u32 v{F_VW}, v{t}, v{t+1}")
    a(f"v_lshlrev_b32 v{F_VA}, 4, v0")
    a(f"v_lshrrev_b32 v{t}, 4, v0")
    a(f"v_and_b32 v{t+1}, 1, v{t}")
    a(f"v_lshrrev_b32 v{t+2}, 1, v{t}")
    a(f"v_and_b32 v{t+3}, 15, v0")
    a(f"v_lshrrev_b32 v{t+4}, 2, v{t+3}")
    a(f"v_and_b32 v{t+5}, 3, v{t+3}")
    a(f"v_lshlrev_b32 v{t+6}, 2, v{t+2}")
    a(f"v_add_u32 v{t+6}, v{t+6}, v{t+4}")
    a(f"v_lshlrev_b32 v{t+6}, 7, v{t+6}")
    a(f"v_and_b32 v{t+7}, 1, v{t+5}")
    a(f"v_lshlrev_b32 v{t+7}, 3, v{t+7}")
    a(f"v_add_u32 v{t+6}, v{t+6}, v{t+7}")
    a(f"v_lshrrev_b32 v{t+7}, 1, v{t+5}")
    a(f"v_lshlrev_b32 v{t+7}, 4, v{t+7}")
    a(f"v_lshrrev_b32 v{t+8}, 1, v{t+4}")
    a(f"v_lshlrev_b32 v{t+8}, 6, v{t+8}")
    a(f"v_xor_b32 v{t+7}, v{t+7}, v{t+8}")
    a(f"v_lshlrev_b32 v{t+8}, 5, v{t+1}")
    a(f"v_xor_b32 v{t+7}, v{t+7}, v{t+8}")
    a(f"v_add_u32 v{t+6}, v{t+6}, v{t+7}")
    a(f"v_add_u32 v{F_AW}, s{S_FL}, v{t+6}")
    a(f"v_xor_b32 v{F_AW+1}, 64, v{F_AW}")

def f_issue_w(a, n):
    is_o, rel = f_ksteps()[n]; sl = n % FD
    if is_o: a(f"s_add_u32 s10, s{S_WOO}, {rel*16*1024}"); sr = SRD_WO
    else: a(f"s_add_u32 s10, s{S_WDO}, {rel*16*1024}"); sr = SRD_WD
    a(f"s_add_u32 m0, s{S_FL}, {sl*2048}")
    a("s_add_u32 s11, s10, 8192")
    a(f"buffer_load_dwordx4 v{F_VW}, {srd(sr)}, s10 offen lds")
    a(f"s_add_u32 m0, s{S_FL}, {sl*2048+1024}")
    a("s_nop 0")
    a(f"buffer_load_dwordx4 v{F_VW}, {srd(sr)}, s11 offen lds")

def f_issue_a(a, n):
    is_o, rel = f_ksteps()[n]; sl = n % FD
    base = S_ACTO if is_o else S_ACTH
    a(f"s_add_u32 s10, s{base}, {rel*1024}")
    a(f"s_add_u32 s11, s10, {ACT_RT}")
    a(f"buffer_load_dwordx4 {vr(F_ACT+8*sl,4)}, v{F_VA}, {srd(SRD_WS)}, s10 offen sc1")
    a(f"buffer_load_dwordx4 {vr(F_ACT+8*sl+4,4)}, v{F_VA}, {srd(SRD_WS)}, s11 offen sc1")

def f_wreads(a, n):
    sl = n % FD; fs = F_W + 8 * (n & 1)
    for t in range(2):
        a(f"ds_read_b64_tr_b16 {vr(fs+4*t,2)}, v{F_AW+t} offset:{sl*2048}")
        a(f"ds_read_b64_tr_b16 {vr(fs+4*t+2,2)}, v{F_AW+t} offset:{sl*2048+1024}")

def f_mfma(a, n):
    fs = F_W + 8 * (n & 1); sl = n % FD
    for rt in range(2):
        for t in range(2):
            acc = vr(F_ACC + 16 * (2 * rt + t), 16)
            c = acc if n > 0 else "0"
            a(f"v_mfma_f32_32x32x16_bf16 {acc}, {vr(fs+4*t,4)}, {vr(F_ACT+8*sl+4*rt,4)}, {c}")

def final_segment(a, n0, n1, NK=36):
    raise NotImplementedError

def final_gemm(a):
    NK = 36
    seg_of = lambda n: 0 if n < 12 else (1 if n < 28 else 2)
    seg_start = [0, 12, 28, 36]
    q = a.fq
    def wait_for(tags):
        idxs = [i for i, t in enumerate(q) if t in tags]
        if not idxs: return
        last = max(idxs)
        n_after = len(q) - 1 - last
        a(f"s_waitcnt vmcnt({n_after})")
        del q[:last + 1]
    def iw(n): f_issue_w(a, n); q.extend([('w', n)] * 2)
    def ia(n): f_issue_a(a, n); q.extend([('a', n)] * 2)
    a_issued = a.f_a_issued; w_issued = a.f_w_issued
    for seg in range(3):
        s0, s1 = seg_start[seg], seg_start[seg + 1]
        if seg > 0:
            def voff_f(t1, seg=seg):
                if seg == 1:
                    a(f"s_lshr_b32 s10, s{S_FRT}, 1")
                    a(f"s_add_u32 s10, s10, {FL_3}")
                else:
                    a(f"s_lshr_b32 s10, s{S_FRT}, 2")
                    a(f"s_add_u32 s10, s10, {FL_4}")
                a("s_lshl_b32 s10, s10, 7")
                a(f"v_lshlrev_b32 v{t1}, 2, v0")
                a(f"v_add_u32 v{t1}, s10, v{t1}")
            a("s_waitcnt vmcnt(0)")
            wg_wait(a, S_WAVE, 0, voff_f, 16 if seg == 1 else 32, 3 if seg == 1 else 4, LDS_CNT + 32 + 4 * seg, F_T, F_T + 1, f"fw_f{seg}")
            q.clear()
            stamp(a, 8 + seg, F_T, F_T + 1)
            q.extend([('x',)] * NST)
        while a_issued < min(s1, s0 + FD):
            ia(a_issued); a_issued += 1
        wait_for([('w', s0), ('a', s0)])
        f_wreads(a, s0)
        for n in range(s0, s1):
            if n + 1 < s1:
                wait_for([('w', n + 1), ('a', n + 1)])
                f_wreads(a, n + 1)
                a("s_waitcnt lgkmcnt(4)")
            else:
                a("s_waitcnt lgkmcnt(0)")
            f_mfma(a, n)
            if w_issued < NK and w_issued <= n + FD:
                iw(w_issued); w_issued += 1
            if a_issued < s1 and a_issued <= n + FD:
                ia(a_issued); a_issued += 1

RP = 272
def final_reduce(a):
    T = F_T
    a(f"v_and_b32 v{T}, 31, v0")
    a(f"s_movk_i32 s10, {RP}")
    a(f"v_mul_lo_u32 v{T}, v{T}, s10")
    a(f"v_lshrrev_b32 v{T+1}, 5, v0")
    a(f"v_lshlrev_b32 v{T+1}, 4, v{T+1}")
    a(f"v_add_u32 v{T}, v{T}, v{T+1}")
    a(f"v_add_u32 v{T}, s{S_FL}, v{T}")
    a("v_lshrrev_b32 v2, 3, v0")
    a("v_and_b32 v3, 7, v0")
    a("v_lshlrev_b32 v4, 10, v2")
    a("v_lshlrev_b32 v5, 4, v3")
    a("v_add_u32 v4, v4, v5")
    a(f"s_lshl_b32 s10, s{S_FRT}, 16")
    a(f"s_lshl_b32 s11, s{S_WAVE}, 14")
    a("s_add_u32 s10, s10, s11")
    a(f"s_lshl_b32 s11, s{S_FCB}, 7")
    a("s_add_u32 s12, s10, s11")
    a("s_add_u32 s13, s12, 8192")
    a(f"buffer_load_dwordx4 v[8:11], v4, {srd(SRD_X)}, s12 offen")
    a(f"buffer_load_dwordx4 v[12:15], v4, {srd(SRD_X)}, s13 offen")
    for rt in range(2):
        for t in range(2):
            for q in range(4):
                r = F_ACC + 16 * (2 * rt + t) + 4 * q
                a(f"ds_write_b128 v{T}, {vr(r,4)} offset:{rt*32*RP + (t*32+8*q)*4}")
    a("s_waitcnt lgkmcnt(0)")
    a(f"v_mov_b32 v6, {LDS_CNT+12}")
    a("v_mov_b32 v7, 1")
    a("s_mov_b64 exec, 1")
    a("ds_add_u32 v6, v7")
    a("s_mov_b64 exec, -1")
    lds_wait_count(a, LDS_CNT + 12, 4, 6, 7, "fr_bar")
    a(f"s_movk_i32 s10, {RP}")
    a("v_mul_lo_u32 v6, v2, s10")
    a("v_lshlrev_b32 v7, 5, v3")
    a("v_add_u32 v6, v6, v7")
    a(f"s_mul_i32 s10, s{S_WAVE}, {16*RP}")
    a(f"s_add_u32 s10, s10, {BLK}")
    a("v_add_u32 v6, s10, v6")
    a(f"v_add_u32 v7, {2*F_RING}, v6")
    B0 = 128
    for it in range(2):
        for w in range(4):
            base = B0 + 32 * it + 8 * w
            av = 6 + (w >> 1)
            a(f"ds_read_b128 {vr(base,4)}, v{av} offset:{(w&1)*F_RING + it*8*RP}")
            a(f"ds_read_b128 {vr(base+4,4)}, v{av} offset:{(w&1)*F_RING + it*8*RP + 16}")
    a("s_waitcnt vmcnt(0) lgkmcnt(0)")
    for it in range(2):
        b = B0 + 32 * it; xr = 8 + 4 * it
        for e in range(8):
            a(f"v_add_f32 v{b+e}, v{b+e}, v{b+8+e}")
            a(f"v_add_f32 v{b+16+e}, v{b+16+e}, v{b+24+e}")
        for e in range(8): a(f"v_add_f32 v{b+e}, v{b+e}, v{b+16+e}")
        for d in range(4):
            a(f"v_lshlrev_b32 v{b+8}, 16, v{xr+d}")
            a(f"v_and_b32 v{b+9}, 0xffff0000, v{xr+d}")
            a(f"v_add_f32 v{b+2*d}, v{b+2*d}, v{b+8}")
            a(f"v_add_f32 v{b+2*d+1}, v{b+2*d+1}, v{b+9}")
        for d in range(4): a(f"v_cvt_pk_bf16_f32 v{b+16+d}, v{b+2*d}, v{b+2*d+1}")
        a(f"buffer_store_dwordx4 {vr(b+16,4)}, v4, {srd(SRD_OUT)}, s{12+it} offen")

def c_phaseB(a):
    lds_inc(a, LDS_CNT + 8, 12, 13)
    epi_pair_unit(a, ACCX, S_U_LATE, 6, FR0)
    stamp(a, 7, 12, 13)
    lds_wait_count(a, LDS_CNT + 8, 4, 12, 13, "cbar")
    f_setup(a)
    if os.environ.get("CPRIO"):
        a("s_waitcnt vmcnt(0)")
        lds_arrive_last(a, LDS_CNT + 16, 12, 13, "c_fl2")
        flag_set(a, 3, 12, 13)
        a("L_c_fl2_skip:")
        lds_wait_count(a, LDS_CNT + 52, 4, 12, 13, "c_prio")
        a.fq = []
        for n in range(FD):
            f_issue_w(a, n); a.fq.extend([('w', n)] * 2)
        a.f_w_issued = FD
    else:
        a.fq = [('s',)] * (4 + NST)
        for n in range(FD):
            f_issue_w(a, n); a.fq.extend([('w', n)] * 2)
        a.f_w_issued = FD
        a(f"s_waitcnt vmcnt({2*FD})")
        del a.fq[:4 + NST]
        lds_arrive_last(a, LDS_CNT + 16, 12, 13, "c_fl2")
        flag_set(a, 3, 12, 13)
        a("L_c_fl2_skip:")
    def voff_f0(t1):
        a(f"s_lshr_b32 s10, s{S_FRT}, 1")
        a(f"s_add_u32 s10, s10, {FL_2}")
        a("s_lshl_b32 s10, s10, 7")
        a(f"v_lshlrev_b32 v{t1}, 2, v0")
        a(f"v_add_u32 v{t1}, s10, v{t1}")
    wg_wait(a, S_WAVE, 0, voff_f0, 16, 2, LDS_CNT + 32, F_T, F_T + 1, "fw_f0")
    for n in range(FD):
        f_issue_a(a, n); a.fq.extend([('a', n)] * 2)
    a.f_a_issued = FD

def gen():
    a = Asm()
    prologue(a)
    stamp(a, 0, 4, 5)
    touch_t0(a, 48)
    for k in range(16):
        if LST: a(f"s_mov_b32 s{16+k}, 0")
    lstamp(a, 0)
    a(f"s_cmp_ge_u32 s{S_WAVE}, 4")
    a("s_cbranch_scc1 L_hwave")
    c_phaseA(a)
    lstamp(a, 10)
    c_phaseB(a)
    final_gemm(a)
    stamp(a, 11, F_T, F_T + 1)
    lstamp(a, 14)
    final_reduce(a)
    a("s_waitcnt vmcnt(0)")
    lstamp(a, 15)
    ldump(a, 4, 5)
    a("s_waitcnt vmcnt(0)")
    stamp(a, 12, 4, 5)
    a("s_endpgm")
    a("L_hwave:")
    a.forget_waits()
    a(f"s_sub_u32 s{S_HW}, s{S_WAVE}, 4")
    h_phaseA(a)
    stamp(a, 1, H_T, H_T + 1)
    attention(a)
    a("s_waitcnt vmcnt(0)")
    stamp(a, 5, 6, 7)
    lstamp(a, 13)
    ldump(a, 6, 7)
    a("s_waitcnt vmcnt(0)")
    a("L_exit:")
    a("s_endpgm")
    return a

HEADER = open("parallel_sum__sliding_block__glu_gated_glu__prompt.s.ref").read().split("; Override")[0]
def emit(path):
    a = gen()
    if a.errors:
        print("\n".join(a.errors[:30])); print(len(a.errors), "errors")
    out = HEADER + f"; @launch grid=(256,1,1) block=(512,1,1) lds={LDS_TOTAL}\n"
    out += '.amdgcn_target "amdgcn-amd-amdhsa--gfx950"\n.text\n'
    out += f".globl {KNAME}\n.p2align 8\n.type {KNAME},@function\n{KNAME}:\n" + a.text()
    out += (f'.section .rodata,"a"\n.p2align 6\n.amdhsa_kernel {KNAME}\n  .amdhsa_next_free_vgpr 256\n  .amdhsa_next_free_sgpr 102\n'
            f'  .amdhsa_accum_offset 256\n  .amdhsa_group_segment_fixed_size 0\n  .amdhsa_kernarg_size 80\n  .amdhsa_user_sgpr_count 2\n'
            f'  .amdhsa_user_sgpr_kernarg_segment_ptr 1\n  .amdhsa_system_sgpr_workgroup_id_x 1\n.end_amdhsa_kernel\n')
    open(path, "w").write(out)
    print("instrs", a.count, "nops", a.nops_inserted)
if __name__ == "__main__":
    emit(sys.argv[1] if len(sys.argv) > 1 else "f.s")
```

```python
import sys, os, struct
sys.path.insert(0, os.path.dirname(os.path.abspath(__file__)))
from asmlib import Asm

KNAME = "parallel_sum__sliding_block__glu_gated_glu__prompt_kernel"
STAMPS = int(os.environ.get("STAMPS", "0"))
NOFLAG = int(os.environ.get("NOFLAG", "0"))

WS_Q, WS_K, WS_V = 0, 2 << 20, 4 << 20
WS_ACT = 6 << 20
ACT_RT = 144 * 1024
WS_STAT = WS_ACT + 64 * ACT_RT
WS_CSP = WS_STAT + 65536
WS_FLAG = 16 << 20
FL_1R, FL_1C, FL_2, FL_3, FL_4, FL_EPOCH = 0, 16, 32, 48, 64, 80
WS_BYTES = WS_FLAG + 128 * 128
assert WS_CSP + 16 * 10240 <= WS_FLAG
S_TAG = 33
WS_DBG = 32 << 20

S_WAVE = 3
S_XCD, S_J, S_RB, S_CG, S_M, S_I = 4, 5, 6, 7, 8, 9
SRD_X, SRD_WQKV, SRD_WO, SRD_WG, SRD_WU, SRD_WD, SRD_OUT, SRD_DBG, SRD_WS = 36, 40, 44, 48, 52, 56, 60, 64, 68
LOG2E = 1.4426950408889634
QSCALE = 0.25 * LOG2E
def f32bits(x): return struct.unpack('<I', struct.pack('<f', x))[0]
def srd(n): return f"s[{n}:{n+3}]"
def vr(a, n=1): return f"v{a}" if n == 1 else f"v[{a}:{a+n-1}]"

BLK = 16384
NBLK = 9
LDS_MISC = 0
LDS_CS = LDS_MISC
LDS_ST = LDS_MISC + 10240
LDS_RS = LDS_MISC + 12288
LDS_CNT = LDS_MISC + 12800
LDS_TOTAL = 163840
def item_of(kind, s):
    return 2 * s if kind == 'X' else (2 * s + 1 if kind == 'W' else 16 + (s - 8))
def blk_addr(item): return BLK + (item % NBLK) * BLK
NITEMS = 28
def item_free_after(i):
    j = i - NBLK
    if j < 16: return j // 2 + 1
    return (j - 16 + 8) + 1

def stamp(a, idx, t0, t1):
    if not STAMPS: return
    a("s_memrealtime s[98:99]")
    a("s_memtime s[100:101]")
    a("s_waitcnt lgkmcnt(0)")
    a("s_lshl_b32 s99, s2, 3")
    a(f"s_add_u32 s99, s99, s{S_WAVE}")
    a("s_lshl_b32 s99, s99, 8")
    a(f"s_add_u32 s99, s99, {WS_DBG + idx*4}")
    a(f"v_mov_b32 v{t0}, s98")
    a(f"v_mov_b32 v{t1}, s99")
    a(f"buffer_store_dword v{t0}, v{t1}, {srd(SRD_WS)}, 0 offen")
    a(f"v_mov_b32 v{t0}, s100")
    a(f"buffer_store_dword v{t0}, v{t1}, {srd(SRD_WS)}, 0 offen offset:128")
NST = 2 if STAMPS else 0

LST = int(os.environ.get("LST", "0"))
def lstamp(a, k):
    if not LST: return
    a("s_memrealtime s[98:99]")
    a("s_waitcnt lgkmcnt(0)")
    a(f"s_mov_b32 s{16+k}, s98")
def ldump(a, t0, t1):
    if not LST: return
    a("s_lshl_b32 s99, s2, 3")
    a(f"s_add_u32 s99, s99, s{S_WAVE}")
    a("s_lshl_b32 s99, s99, 8")
    a(f"s_add_u32 s99, s99, {WS_DBG}")
    a(f"v_mov_b32 v{t1}, s99")
    for k in range(16):
        a(f"v_mov_b32 v{t0}, s{16+k}")
        a(f"buffer_store_dword v{t0}, v{t1}, {srd(SRD_WS)}, 0 offen offset:{4*k}")

def prologue(a):
    a("s_cmp_ge_u32 s2, 256")
    a("s_cbranch_scc1 L_exit")
    a("s_load_dwordx16 s[16:31], s[0:1], 0")
    a("s_load_dwordx4 s[32:35], s[0:1], 64")
    a("v_lshrrev_b32 v1, 6, v0")
    a("v_and_b32 v0, 63, v0")
    a(f"v_readfirstlane_b32 s{S_WAVE}, v1")
    a(f"s_and_b32 s{S_XCD}, s2, 7")
    a(f"s_lshr_b32 s{S_J}, s2, 3")
    a(f"s_and_b32 s10, s{S_XCD}, 1")
    a("s_lshl_b32 s10, s10, 3")
    a(f"s_and_b32 s11, s{S_J}, 7")
    a(f"s_add_u32 s{S_RB}, s10, s11")
    a(f"s_lshr_b32 s{S_M}, s{S_XCD}, 1")
    a(f"s_lshr_b32 s{S_I}, s{S_J}, 3")
    a(f"s_lshl_b32 s10, s{S_M}, 2")
    a(f"s_add_u32 s{S_CG}, s10, s{S_I}")
    units(a)
    a(f"s_and_b32 s{S_ROT}, s{S_J}, {int(os.environ.get('ROT', '0'))}")
    a("s_waitcnt lgkmcnt(0)")
    def mk(dst, lo, size):
        a(f"s_mov_b32 s{dst}, s{lo}")
        a(f"s_mov_b32 s{dst+1}, s{lo+1}")
        a(f"s_mov_b32 s{dst+2}, {size}")
        a(f"s_mov_b32 s{dst+3}, 0x20000")
    mk(SRD_X, 16, 2048 * 512 * 2)
    mk(SRD_WQKV, 18, 512 * 1536 * 2)
    mk(SRD_WO, 20, 512 * 512 * 2)
    mk(SRD_WG, 24, 512 * 1792 * 2)
    mk(SRD_WU, 26, 512 * 1792 * 2)
    mk(SRD_WD, 28, 1792 * 512 * 2)
    mk(SRD_OUT, 30, 2048 * 512 * 2)
    mk(SRD_DBG, 32, 256)
    mk(SRD_WS, 34, (64 << 20) if (STAMPS or LST) else WS_BYTES)
    a(f"s_add_u32 s12, s34, {WS_FLAG + FL_EPOCH*128}")
    a("s_addc_u32 s13, s35, 0")
    a("s_load_dword s32, s[12:13], 0")

S_U_EARLY, S_U_LATE, S_U_Q2 = 90, 91, 92
S_ROT = 95
def units(a):
    a(f"s_mul_i32 s{S_U_EARLY}, s{S_M}, 7")
    a(f"s_lshl_b32 s14, s{S_I}, 1")
    a(f"s_add_u32 s{S_U_EARLY}, s{S_U_EARLY}, s14")
    a(f"s_cmp_eq_u32 s{S_I}, 3")
    a("s_cselect_b32 s14, 0, 1")
    a(f"s_add_u32 s{S_U_LATE}, s{S_U_EARLY}, s14")
    a(f"s_lshl_b32 s10, s{S_M}, 1")
    a(f"s_add_u32 s10, s10, s{S_I}")
    a("s_add_u32 s10, s10, 16")
    a(f"s_lshl_b32 s11, s{S_M}, 2")
    a(f"s_cmp_eq_u32 s{S_I}, 2")
    a("s_cselect_b32 s10, s11, s10")
    a("s_add_u32 s12, s11, 3")
    a(f"s_cmp_eq_u32 s{S_I}, 3")
    a(f"s_cselect_b32 s{S_U_Q2}, s12, s10")

def tile_addr_regs(a, VAP, VAQ, tmp):
    t = tmp
    a(f"v_lshrrev_b32 v{t}, 4, v0")
    a(f"v_and_b32 v{t+1}, 1, v{t}")
    a(f"v_lshrrev_b32 v{t+2}, 1, v{t}")
    a(f"v_and_b32 v{t+3}, 15, v0")
    a(f"v_lshrrev_b32 v{t+4}, 2, v{t+3}")
    a(f"v_and_b32 v{t+5}, 3, v{t+3}")
    a(f"v_lshlrev_b32 v{t+6}, 3, v{t+2}")
    a(f"v_add_u32 v{t+6}, v{t+6}, v{t+4}")
    a(f"v_lshlrev_b32 v{t+6}, 7, v{t+6}")
    a(f"v_and_b32 v{t+7}, 1, v{t+5}")
    a(f"v_lshlrev_b32 v{t+7}, 3, v{t+7}")
    a(f"v_add_u32 v{t+6}, v{t+6}, v{t+7}")
    a(f"v_lshrrev_b32 v{t+7}, 1, v{t+5}")
    a(f"v_lshlrev_b32 v{t+7}, 4, v{t+7}")
    a(f"v_lshrrev_b32 v{t+8}, 1, v{t+4}")
    a(f"v_lshlrev_b32 v{t+8}, 6, v{t+8}")
    a(f"v_xor_b32 v{t+7}, v{t+7}, v{t+8}")
    a(f"v_lshlrev_b32 v{t+8}, 5, v{t+1}")
    a(f"v_xor_b32 v{t+9}, v{t+7}, v{t+8}")
    a(f"v_add_u32 v{VAQ}, v{t+6}, v{t+9}")
    a(f"v_xor_b32 v{VAQ+1}, 64, v{VAQ}")
    a(f"v_lshlrev_b32 v{t+8}, 13, v{t+1}")
    a(f"v_add_u32 v{VAP}, v{VAQ}, v{t+8}")
    for j in range(1, 4): a(f"v_xor_b32 v{VAP+j}, {j*32}, v{VAP}")

def xfrag_addr(a, VAX, wave_sgpr_rows, tmp):
    t = tmp
    a(f"v_and_b32 v{t}, 31, v0")
    a(f"v_lshrrev_b32 v{t+1}, 5, v0")
    a(f"v_lshrrev_b32 v{t+2}, 1, v{t}")
    a(f"v_and_b32 v{t+2}, 7, v{t+2}")
    a(f"v_xor_b32 v{t+2}, v{t+2}, v{t+1}")
    a(f"v_lshlrev_b32 v{t+2}, 4, v{t+2}")
    a(f"v_lshlrev_b32 v{t}, 7, v{t}")
    a(f"v_add_u32 v{t}, v{t}, v{t+2}")
    a(f"v_add_u32 v{VAX}, s{wave_sgpr_rows}, v{t}")
    for kl in range(1, 4): a(f"v_xor_b32 v{VAX+kl}, {kl*32}, v{VAX}")

def pass_tiles(kind, npan=1):
    if kind == 'P': return [('P', j, 0) for j in range(4)]
    return [('Q', t, p * 8192) for p in range(npan) for t in range(2)]

def stage_info(s):
    if s < 8: return item_of('W', s), 4
    if s < 12: return item_of('S', s), 8
    return item_of('S', s), 4

H_VOX0, H_VOX1, H_VO1, H_VO2, H_VO3 = 1, 2, 3, 4, 5
H_AP, H_AQ, H_AX = 6, 10, 12
H_FR = 16
H_XF = 32
H_SUM = 48
H_CS = 56
H_ONE = 60
H_T = 62
S_HW = 80
S_SO1, S_SO2, S_SO3, S_ST1, S_SOX, S_HL = 76, 77, 78, 79, 81, 82
SRD_P1, SRD_P3 = 72, 84

NI = 4
def h_setup(a):
    t = H_T
    a(f"v_lshrrev_b32 v{t}, 3, v0")
    a(f"v_and_b32 v{t+1}, 7, v0")
    a(f"v_lshrrev_b32 v{t+2}, 4, v0")
    a(f"v_xor_b32 v{t+3}, v{t+1}, v{t+2}")
    a(f"v_lshlrev_b32 v{t+3}, 4, v{t+3}")
    a(f"v_lshlrev_b32 v{t+4}, 10, v{t}")
    a(f"v_add_u32 v{H_VOX0}, v{t+4}, v{t+3}")
    a(f"v_xor_b32 v{H_VOX1}, 64, v{H_VOX0}")
    a(f"v_and_b32 v{t+2}, 1, v{t+2}")
    a(f"v_lshlrev_b32 v{t+2}, 2, v{t+2}")
    a(f"v_xor_b32 v{t+1}, v{t+1}, v{t+2}")
    a(f"v_lshlrev_b32 v{t+1}, 4, v{t+1}")
    a("s_movk_i32 s10, 3072")
    a(f"v_mul_lo_u32 v{t+2}, v{t}, s10")
    a(f"v_add_u32 v{H_VO2}, v{t+2}, v{t+1}")
    a("s_movk_i32 s10, 3584")
    a(f"v_mul_lo_u32 v{t+2}, v{t}, s10")
    a(f"s_lshr_b32 s11, s{S_HW}, 1")
    a("s_lshl_b32 s12, s11, 5")
    a(f"v_xor_b32 v{t+3}, s12, v{t+1}")
    a(f"v_add_u32 v{H_VO3}, v{t+2}, v{t+3}")
    a("s_cmp_eq_u32 s11, 0")
    a(f"s_cselect_b32 s{SRD_P3}, s{SRD_WG}, s{SRD_WU}")
    a(f"s_cselect_b32 s{SRD_P3+1}, s{SRD_WG+1}, s{SRD_WU+1}")
    a(f"s_mov_b32 s{SRD_P3+2}, {512*1792*2}")
    a(f"s_mov_b32 s{SRD_P3+3}, 0x20000")
    a(f"s_and_b32 s15, s{S_HW}, 1")
    a("s_mul_i32 s12, s15, 32*3584")
    a(f"s_lshl_b32 s14, s{S_U_LATE}, 7")
    a(f"s_add_u32 s{S_SO3}, s14, s12")
    a(f"s_lshl_b32 s10, s{S_U_Q2}, 7")
    a("s_mul_i32 s12, s15, 32*3072")
    a(f"s_add_u32 s{S_SO2}, s10, s12")
    a(f"s_lshl_b32 s10, s{S_RB}, 17")
    a(f"s_lshl_b32 s12, s{S_HW}, 15")
    a(f"s_add_u32 s{S_SOX}, s10, s12")
    a(f"s_lshl_b32 s{S_HL}, s{S_HW}, 12")
    a(f"s_cmp_eq_u32 s{S_I}, 3")
    a("s_cbranch_scc1 L_h_typeB")
    a(f"v_mov_b32 v{H_VO1}, v{H_VO3}")
    a(f"s_mov_b32 s{SRD_P1}, s{SRD_P3}")
    a(f"s_mov_b32 s{SRD_P1+1}, s{SRD_P3+1}")
    a(f"s_mov_b32 s{SRD_P1+2}, {512*1792*2}")
    a(f"s_lshl_b32 s13, s{S_U_EARLY}, 7")
    a("s_mul_i32 s12, s15, 32*3584")
    a(f"s_add_u32 s{S_SO1}, s13, s12")
    a(f"s_movk_i32 s{S_ST1}, 3584")
    a("s_branch L_h_typeDone")
    a("L_h_typeB:")
    a(f"v_mov_b32 v{H_VO1}, v{H_VO2}")
    a(f"s_mov_b32 s{SRD_P1}, s{SRD_WQKV}")
    a(f"s_mov_b32 s{SRD_P1+1}, s{SRD_WQKV+1}")
    a(f"s_mov_b32 s{SRD_P1+2}, {512*1536*2}")
    a(f"s_lshl_b32 s11, s{S_M}, 2")
    a(f"s_lshr_b32 s10, s{S_HW}, 1")
    a("s_add_u32 s10, s10, s11")
    a("s_add_u32 s10, s10, 1")
    a("s_lshl_b32 s10, s10, 7")
    a("s_mul_i32 s12, s15, 32*3072")
    a(f"s_add_u32 s{S_SO1}, s10, s12")
    a(f"s_movk_i32 s{S_ST1}, 3072")
    a("L_h_typeDone:")
    a(f"s_mov_b32 s{SRD_P1+3}, 0x20000")

def h_item(a, i):
    base = blk_addr(i)
    def chunk(c):
        a(f"s_add_u32 s11, s{S_ROT}, {c}")
        a("s_and_b32 s11, s11, 7")
    if i < 16 and i % 2 == 0:
        s = i // 2
        chunk(s)
        a("s_lshl_b32 s11, s11, 7")
        a(f"s_add_u32 s11, s11, s{S_SOX}")
        for q in range(4):
            a(f"s_add_u32 s10, s11, {q*8*1024}")
            a(f"s_add_u32 m0, s{S_HL}, {base + q*1024}")
            a(f"buffer_load_dwordx4 v{H_VOX1 if q & 1 else H_VOX0}, {srd(SRD_X)}, s10 offen lds")
    elif i < 16:
        s = i // 2
        chunk(s)
        a("s_lshl_b32 s11, s11, 6")
        a(f"s_mul_i32 s11, s11, s{S_ST1}")
        a(f"s_add_u32 s11, s11, s{S_SO1}")
        a(f"s_lshl_b32 s12, s{S_ST1}, 3")
        for q in range(4):
            a(f"s_add_u32 m0, s{S_HL}, {base + q*1024}")
            a(f"buffer_load_dwordx4 v{H_VO1}, {srd(SRD_P1)}, s11 offen lds")
            if q < 3: a("s_add_u32 s11, s11, s12")
    else:
        s = i - 16 + 8
        if s < 12:
            a(f"s_lshr_b32 s11, s{S_HW}, 1")
            a(f"s_add_u32 s11, s11, s{S_ROT}")
            a(f"s_add_u32 s11, s11, {2*(s-8)}")
            a("s_and_b32 s11, s11, 7")
            a("s_mul_i32 s11, s11, 64*3072")
            a(f"s_add_u32 s11, s11, s{S_SO2}")
            v, sr, st = H_VO2, SRD_WQKV, 3072
        else:
            chunk(s - 12)
            a("s_mul_i32 s11, s11, 64*3584")
            a(f"s_add_u32 s11, s11, s{S_SO3}")
            v, sr, st = H_VO3, SRD_P3, 3584
        for q in range(4):
            a(f"s_add_u32 s10, s11, {8*q*st}")
            a(f"s_add_u32 m0, s{S_HL}, {base + q*1024}")
            a(f"buffer_load_dwordx4 v{v}, {srd(sr)}, s10 offen lds")

class AG:
    def __init__(self, regs): self.regs = regs; self.bias = 0
    def off(self, a, base):
        w = (base // (3 * BLK)) * 3 * BLK
        if w != self.bias:
            d = w - self.bias
            for r in self.regs:
                if d > 0: a(f"v_add_u32 v{r}, {d}, v{r}")
                else: a(f"v_subrev_u32 v{r}, {-d}, v{r}")
            self.bias = w
        return base - w

H_EP = 18
H_PL = 16
H_G = 20
NBAR = 15
WS_CS = WS_CSP
def h_loader(a):
    issued = []
    def outstanding(): return sum(n for t, n in issued)
    def wait_tags(need):
        idx = [k for k, (t, n) in enumerate(issued) if t in need]
        if not idx: return
        last = max(idx)
        a(f"s_waitcnt vmcnt({sum(n for t, n in issued[last+1:])})")
        del issued[:last + 1]
    def issue(i):
        while outstanding() + NI > 60:
            wait_tags([issued[0][0]])
        h_item(a, i); issued.append((i, NI))
    h_setup(a)
    nextitem = 0
    issued.append(('touch', 2))
    while nextitem < 2: issue(nextitem); nextitem += 1
    wait_tags(['touch'])
    epoch_ready(a)
    if os.environ.get("DELAYH"):
        a(f"s_mov_b32 s15, {os.environ['DELAYH']}")
        a("L_dly:")
        a("s_sleep 8")
        a("s_sub_u32 s15, s15, 1")
        a("s_cmp_lg_u32 s15, 0")
        a("s_cbranch_scc1 L_dly")
    while nextitem < int(os.environ.get("INIT_ITEMS", "4")): issue(nextitem); nextitem += 1
    a(f"v_lshlrev_b32 v{H_T}, 2, v0")
    a(f"v_mov_b32 v{H_T+1}, 0")
    a(f"ds_write_b32 v{H_T}, v{H_T+1} offset:{LDS_CNT}")
    a(f"v_and_b32 v{H_T}, 15, v0")
    a(f"v_lshlrev_b32 v{H_T}, 2, v{H_T}")
    a(f"s_lshl_b32 s10, s{S_RB}, 7")
    a(f"s_add_u32 s10, s10, {FL_1R*128}")
    a(f"v_add_u32 v{H_T+1}, s10, v{H_T}")
    a(f"s_lshl_b32 s10, s{S_CG}, 7")
    a(f"s_add_u32 s10, s10, {FL_1C*128}")
    a(f"v_add_u32 v{H_T+2}, s10, v{H_T}")
    a("v_cmp_gt_u32 vcc, 16, v0")
    a(f"v_cndmask_b32 v{H_PL+1}, v{H_T+2}, v{H_T+1}, vcc")
    for s in range(0, NBAR):
        if s < 8: need = [item_of('X', s), item_of('W', s)]
        elif s < 14: need = [item_of('S', s)]
        else: need = [NITEMS - 1]
        wait_tags(need)
        if (STAMPS == 2 and s < 15) or (STAMPS == 1 and s in (0, 4, 8, 12)):
            stamp(a, 8 + s, H_T, H_T + 1); issued.append(('st', 2))
        if s in (0, 12): a("s_waitcnt lgkmcnt(0)")
        a("s_barrier")
        if s == 7:
            a(f"s_mov_b32 s14, {WS_FLAG}")
            a(f"buffer_load_dword v{H_PL}, v{H_PL+1}, {srd(SRD_WS)}, s14 offen sc1"); issued.append(('poll', 1))
        if s == 9:
            wait_tags(['poll'])
            a(f"s_add_u32 s13, s{S_TAG}, 1")
            a(f"v_cmp_ne_u32 vcc, s13, v{H_PL}")
            a("s_and_b64 vcc, vcc, 0xffffffff")
            a("s_cmp_eq_u64 vcc, 0")
            a("s_cbranch_scc1 L_h_pok")
            flag_wait(a, 32, 1, H_PL, H_PL + 1, "fw_prep")
            a("L_h_pok:")
            a(f"v_and_b32 v{H_T}, 31, v0")
            a(f"s_lshl_b32 s10, s{S_RB}, 7")
            a(f"s_lshl_b32 s11, s{S_HW}, 5")
            a("s_add_u32 s10, s10, s11")
            a(f"v_add_u32 v{H_T}, s10, v{H_T}")
            a(f"v_lshlrev_b32 v{H_T}, 4, v{H_T}")
            a(f"s_mov_b32 s10, {WS_STAT}")
            a(f"buffer_load_dwordx4 {vr(H_G,4)}, v{H_T}, {srd(SRD_WS)}, s10 offen sc1"); issued.append(('g', 1))
            a(f"v_lshlrev_b32 v{H_T+1}, 4, v0")
            a(f"s_mul_i32 s10, s{S_CG}, 10240")
            a(f"s_add_u32 s10, s10, {WS_CSP}")
            a(f"s_lshl_b32 s11, s{S_HW}, 10")
            a("s_add_u32 s10, s10, s11")
            for q in range(3):
                if q == 2:
                    a(f"s_cmp_lt_u32 s{S_HW}, 2")
                    a("s_cselect_b32 s11, 4096, 0")
                    a("s_add_u32 s10, s10, s11")
                elif q == 1:
                    a("s_add_u32 s10, s10, 4096")
                a(f"buffer_load_dwordx4 {vr(H_G+4+4*q,4)}, v{H_T+1}, {srd(SRD_WS)}, s10 offen sc1"); issued.append(('g', 1))
        cap = 2 * s + int(os.environ.get("LEAD_ITEMS", "8"))
        while nextitem < NITEMS and nextitem < cap and (nextitem < NBLK or item_free_after(nextitem) <= s):
            issue(nextitem); nextitem += 1
        if s == 11:
            wait_tags(['g'])
            a(f"v_and_b32 v{H_T}, 31, v0")
            a(f"s_lshl_b32 s10, s{S_HW}, 5")
            a(f"v_add_u32 v{H_T}, s10, v{H_T}")
            a(f"v_lshlrev_b32 v{H_T+1}, 4, v{H_T}")
            a(f"v_lshlrev_b32 v{H_T}, 2, v{H_T}")
            a("s_mov_b64 exec, 0xffffffff")
            a(f"ds_write_b128 v{H_T+1}, {vr(H_G,4)} offset:{LDS_ST}")
            a(f"ds_write_b32 v{H_T}, v{H_G+1} offset:{LDS_RS}")
            a("s_mov_b64 exec, -1")
            a(f"v_lshlrev_b32 v{H_T}, 4, v0")
            a(f"s_lshl_b32 s10, s{S_HW}, 10")
            a(f"v_add_u32 v{H_T}, s10, v{H_T}")
            a(f"ds_write_b128 v{H_T}, {vr(H_G+4,4)} offset:{LDS_CS}")
            a(f"ds_write_b128 v{H_T}, {vr(H_G+8,4)} offset:{LDS_CS+4096}")
            a(f"s_cmp_lt_u32 s{S_HW}, 2")
            a("s_cbranch_scc0 L_h_nog3")
            a(f"ds_write_b128 v{H_T}, {vr(H_G+12,4)} offset:{LDS_CS+8192}")
            a("L_h_nog3:")

def h_phaseA(a):
    h_loader(a)
    a.forget_waits()

VX = 128
ACCX, ACCY = 64, 32
V_AP, V_AQ, V_AX = 1, 5, 8
V_ST = 7
V_T = 12
FR0, FR1 = 16, 32

def c_setup(a):
    tile_addr_regs(a, V_AP, V_AQ, 16)
    a(f"s_lshl_b32 s10, s{S_WAVE}, 12")
    xfrag_addr(a, V_AX, 10, 16)
    a(f"v_lshlrev_b32 v{V_ST}, 4, v0")
    a.c_agw = AG(list(range(V_AP, V_AP + 4)) + [V_AQ, V_AQ + 1])
    a.c_agx = AG(list(range(V_AX, V_AX + 4)))

S_FRT, S_FCB = 86, 87
def fin_ids(a):
    a(f"s_lshl_b32 s12, s{S_XCD}, 2")
    a(f"s_and_b32 s13, s{S_J}, 3")
    a(f"s_add_u32 s{S_FRT}, s12, s13")
    a(f"s_lshr_b32 s{S_FCB}, s{S_J}, 2")

def xlane_reduce(a, A, n, T):
    for e in range(4): a(f"v_permlane32_swap_b32 v{A+e}, v{A+e+4}")
    for e in range(4): a(f"v_add_f32 v{A+e}, v{A+e}, v{A+e+4}")
    for e in range(2): a(f"v_permlane16_swap_b32 v{A+e}, v{A+e+2}")
    for e in range(2): a(f"v_add_f32 v{A+e}, v{A+e}, v{A+e+2}")

def c_prep(a):
    L = 128
    a(f"s_cmp_eq_u32 s{S_WAVE}, 0")
    a("s_cbranch_scc0 L_prep_cs")
    a("v_lshlrev_b32 v2, 4, v0")
    a(f"s_lshl_b32 s10, s{S_RB}, 17")
    a(f"s_lshl_b32 s11, s{S_CG}, 13")
    a("s_add_u32 s10, s10, s11")
    for r in range(8):
        a(f"s_add_u32 s11, s10, {r*1024}")
        a(f"buffer_load_dwordx4 {vr(L+4*r,4)}, v2, {srd(SRD_X)}, s11 offen")
    a("v_mov_b32 v3, 0x3f803f80")
    S, Q = 16, 24
    for r in range(16): a(f"v_mov_b32 v{16+r}, 0")
    for r in range(8):
        a(f"s_waitcnt vmcnt({7-r})")
        for d in range(4):
            a(f"v_dot2_f32_bf16 v{S+r}, v{L+4*r+d}, v3, v{S+r}")
            a(f"v_dot2_f32_bf16 v{Q+r}, v{L+4*r+d}, v{L+4*r+d}, v{Q+r}")
    xlane_reduce(a, S, 8, 0); xlane_reduce(a, Q, 8, 0)
    for ror in (8, 4, 2, 1):
        for R in (S, S + 1, Q, Q + 1):
            a(f"v_add_f32_dpp v{R}, v{R}, v{R} row_ror:{ror} row_mask:0xf bank_mask:0xf")
    a("v_lshrrev_b32 v4, 4, v0")
    a("v_and_b32 v5, 1, v4")
    a("v_lshlrev_b32 v5, 1, v5")
    a("v_lshrrev_b32 v4, 1, v4")
    a("v_lshlrev_b32 v4, 2, v4")
    a("v_add_u32 v4, v4, v5")
    a(f"s_lshl_b32 s10, s{S_RB}, 7")
    a(f"s_lshl_b32 s11, s{S_CG}, 3")
    a("s_add_u32 s10, s10, s11")
    a("v_add_u32 v4, s10, v4")
    a("v_lshlrev_b32 v4, 4, v4")
    a("v_and_b32 v5, 15, v0")
    a("v_cmp_eq_u32 vcc, 0, v5")
    a("s_mov_b64 s[12:13], vcc")
    for e in range(2):
        m, q = S + e, Q + e
        O = 32 + 4 * e
        a(f"v_mul_f32 v{m}, {f32bits(1/512.0):#x}, v{m}")
        a(f"v_mul_f32 v{q}, {f32bits(1/512.0):#x}, v{q}")
        a(f"v_mul_f32 v{O}, v{m}, v{m}")
        a(f"v_sub_f32 v{q}, v{q}, v{O}")
        a(f"v_max_f32 v{q}, 0, v{q}")
        a(f"v_cvt_pk_bf16_f32 v{m}, v{m}, v{m}")
        a(f"v_cvt_pk_bf16_f32 v{q}, v{q}, v{q}")
        a(f"v_lshlrev_b32 v{q}, 16, v{q}")
        a(f"v_add_f32 v{q}, {f32bits(1e-5):#x}, v{q}")
        a(f"v_cvt_pk_bf16_f32 v{q}, v{q}, v{q}")
        a(f"v_lshlrev_b32 v{q}, 16, v{q}")
        a(f"v_sqrt_f32 v{q}, v{q}")
        a(f"v_cvt_pk_bf16_f32 v{q}, v{q}, v{q}")
        a(f"v_lshlrev_b32 v{O+2}, 16, v{q}")
        a(f"v_rcp_f32 v{O+1}, v{O+2}")
        a(f"v_xor_b32 v{O}, 0x80008000, v{m}")
        a(f"v_mov_b32 v{O+3}, 0")
    a(f"s_mov_b32 s10, {WS_STAT}")
    a("s_mov_b64 exec, s[12:13]")
    a(f"buffer_store_dwordx4 v[32:35], v4, {srd(SRD_WS)}, s10 offen sc1")
    a(f"buffer_store_dwordx4 v[36:39], v4, {srd(SRD_WS)}, s10 offen offset:16 sc1")
    a("s_mov_b64 exec, -1")
    a("s_branch L_prep_done")
    a("L_prep_cs:")
    a.forget_waits()
    a(f"s_lshr_b32 s11, s{S_RB}, 3")
    a("s_mul_i32 s11, s11, 3")
    a(f"s_add_u32 s11, s11, s{S_WAVE}")
    a("s_sub_u32 s11, s11, 1")
    a("s_cmp_ge_u32 s11, 5")
    a("s_cbranch_scc1 L_prep_done")
    a(f"s_and_b32 s12, s{S_RB}, 7")
    T = 76
    a(f"s_lshl_b32 s{T}, s{S_M}, 2")
    a(f"s_add_u32 s{T}, s{T}, 1")
    a(f"s_add_u32 s{T}, s{T}, s11")
    a(f"s_lshl_b32 s{T+1}, s11, 1")
    a(f"s_cmp_eq_u32 s{S_I}, 3")
    a(f"s_cselect_b32 s{T+2}, 2, s11")
    a(f"s_cselect_b32 s{T+3}, s{T}, s{S_U_EARLY}")
    a(f"s_cselect_b32 s{T+4}, s{T+1}, 0")
    a("s_cmp_eq_u32 s11, 2")
    a(f"s_cselect_b32 s{T+2}, 2, s{T+2}")
    a(f"s_cselect_b32 s{T+3}, s{S_U_Q2}, s{T+3}")
    a(f"s_cselect_b32 s{T+4}, 4, s{T+4}")
    a(f"s_sub_u32 s{T}, s11, 3")
    a("s_cmp_ge_u32 s11, 3")
    a(f"s_cselect_b32 s{T+2}, s{T}, s{T+2}")
    a(f"s_cselect_b32 s{T+3}, s{S_U_LATE}, s{T+3}")
    a(f"s_cselect_b32 s{T+4}, 6, s{T+4}")
    a(f"s_cmp_eq_u32 s{T+2}, 0")
    a(f"s_cselect_b32 s72, s{SRD_WG}, s{SRD_WU}")
    a(f"s_cselect_b32 s73, s{SRD_WG+1}, s{SRD_WU+1}")
    a(f"s_mov_b32 s74, {512*1792*2}")
    a(f"s_movk_i32 s{T+5}, 3584")
    a(f"s_cmp_eq_u32 s{T+2}, 2")
    a(f"s_cselect_b32 s72, s{SRD_WQKV}, s72")
    a(f"s_cselect_b32 s73, s{SRD_WQKV+1}, s73")
    a(f"s_cselect_b32 s74, {512*1536*2}, s74")
    a("s_mov_b32 s75, 0x20000")
    a(f"s_cselect_b32 s{T+5}, 3072, s{T+5}")
    a(f"s_lshl_b32 s14, s{T+3}, 7")
    a(f"s_lshl_b32 s13, s12, 6")
    a(f"s_mul_i32 s13, s13, s{T+5}")
    a("s_add_u32 s14, s14, s13")
    a("v_lshrrev_b32 v2, 3, v0")
    a("v_and_b32 v3, 7, v0")
    a(f"v_mul_lo_u32 v6, v2, s{T+5}")
    a("v_lshlrev_b32 v7, 4, v3")
    a("v_add_u32 v6, v6, v7")
    a(f"s_lshl_b32 s13, s{T+5}, 3")
    for q in range(8):
        a(f"buffer_load_dwordx4 {vr(L+4*q,4)}, v6, s[72:75], s14 offen")
        if q < 7: a("s_add_u32 s14, s14, s13")
    a("v_mov_b32 v4, 0x00003f80")
    a("v_mov_b32 v5, 0x3f800000")
    A = 16
    for e in range(8): a(f"v_mov_b32 v{A+e}, 0")
    for q in range(8):
        a(f"s_waitcnt vmcnt({7-q})")
        for d in range(4):
            a(f"v_dot2_f32_bf16 v{A+2*d}, v{L+4*q+d}, v4, v{A+2*d}")
            a(f"v_dot2_f32_bf16 v{A+2*d+1}, v{L+4*q+d}, v5, v{A+2*d+1}")
    xlane_reduce(a, A, 8, 0)
    for e in range(2): a(f"v_add_f32_dpp v{A+e}, v{A+e}, v{A+e} row_ror:8 row_mask:0xf bank_mask:0xf")
    for e in range(2):
        a(f"v_cvt_pk_bf16_f32 v{A+2+e}, v{A+e}, v{A+e}")
        a(f"v_lshlrev_b32 v{A+2+e}, 16, v{A+2+e}")
        a(f"v_sub_f32 v{A+2+e}, v{A+e}, v{A+2+e}")
        a(f"v_cvt_pk_bf16_f32 v{A+e}, v{A+e}, v{A+2+e}")
    a("v_lshrrev_b32 v8, 4, v0")
    a("v_and_b32 v9, 1, v8")
    a("v_lshlrev_b32 v9, 1, v9")
    a("v_lshrrev_b32 v8, 1, v8")
    a("v_lshlrev_b32 v8, 2, v8")
    a("v_add_u32 v8, v8, v9")
    a("v_lshlrev_b32 v9, 3, v3")
    a("v_add_u32 v8, v8, v9")
    a("v_lshrrev_b32 v9, 4, v8")
    a("v_lshlrev_b32 v9, 5, v9")
    a("v_and_b32 v10, 15, v8")
    a("v_add_u32 v9, v9, v10")
    a(f"s_lshl_b32 s13, s{T+2}, 4")
    a("v_add_u32 v9, s13, v9")
    a(f"s_cmp_eq_u32 s{T+2}, 2")
    a("s_cselect_b64 vcc, -1, 0")
    a("v_cndmask_b32 v8, v9, v8, vcc")
    a("v_lshrrev_b32 v9, 5, v8")
    a(f"v_add_u32 v9, s{T+4}, v9")
    a("v_lshlrev_b32 v9, 10, v9")
    a("v_and_b32 v8, 31, v8")
    a("v_lshlrev_b32 v8, 4, v8")
    a("v_add_u32 v8, v8, v9")
    a("s_lshr_b32 s13, s12, 2")
    a("s_lshl_b32 s13, s13, 9")
    a("s_and_b32 s14, s12, 3")
    a("s_lshl_b32 s14, s14, 2")
    a("s_add_u32 s13, s13, s14")
    a(f"s_mul_i32 s14, s{S_CG}, 10240")
    a("s_add_u32 s14, s14, s13")
    a(f"s_add_u32 s14, s14, {WS_CSP}")
    a("v_and_b32 v9, 8, v0")
    a("v_cmp_eq_u32 vcc, 0, v9")
    a("s_mov_b64 s[12:13], vcc")
    a("s_mov_b64 exec, s[12:13]")
    a(f"buffer_store_dword v{A}, v8, {srd(SRD_WS)}, s14 offen sc1")
    a(f"buffer_store_dword v{A+1}, v8, {srd(SRD_WS)}, s14 offen offset:16 sc1")
    a("s_mov_b64 exec, -1")
    a("L_prep_done:")
    a.forget_waits()
    a.nop(8)

def epoch_ready(a):
    a("s_waitcnt lgkmcnt(0)")
    a(f"s_add_u32 s{S_TAG}, s32, 1")
    a(f"s_lshl_b32 s{S_TAG}, s{S_TAG}, 3")

def touch_t0(a, dst):
    a(f"s_cmp_ge_u32 s{S_WAVE}, 4")
    a("s_cbranch_scc1 L_tt_w")
    a("v_lshrrev_b32 v2, 3, v0")
    a("v_lshlrev_b32 v2, 10, v2")
    a("v_and_b32 v3, 7, v0")
    a("v_lshlrev_b32 v3, 7, v3")
    a("v_add_u32 v2, v2, v3")
    a(f"s_lshl_b32 s10, s{S_RB}, 17")
    a(f"s_lshl_b32 s11, s{S_I}, 15")
    a("s_add_u32 s10, s10, s11")
    a(f"s_lshl_b32 s11, s{S_WAVE}, 13")
    a("s_add_u32 s10, s10, s11")
    a(f"buffer_load_dword v{dst}, v2, {srd(SRD_X)}, s10 offen")
    a("s_branch L_tt_done")
    a("L_tt_w:")
    a(f"s_and_b32 s10, s{S_J}, 7")
    a("s_lshl_b32 s11, s10, 6")
    a("v_add_u32 v2, s11, v0")
    a("s_movk_i32 s12, 3584")
    a("v_mul_lo_u32 v3, v2, s12")
    a("s_movk_i32 s12, 3072")
    a("v_mul_lo_u32 v2, v2, s12")
    a(f"s_cmp_ge_u32 s{S_WAVE}, 6")
    a("s_cbranch_scc1 L_tt_w3")
    a(f"s_cmp_eq_u32 s{S_I}, 3")
    a("s_cbranch_scc1 L_tt_B")
    a(f"s_lshl_b32 s13, s{S_U_EARLY}, 7")
    a(f"s_cmp_eq_u32 s{S_WAVE}, 4")
    a("s_cbranch_scc0 L_tt_up")
    a(f"buffer_load_dword v{dst}, v3, {srd(SRD_WG)}, s13 offen")
    a("s_branch L_tt_done")
    a("L_tt_up:")
    a(f"buffer_load_dword v{dst}, v3, {srd(SRD_WU)}, s13 offen")
    a("s_branch L_tt_done")
    a("L_tt_B:")
    a(f"s_lshl_b32 s13, s{S_M}, 2")
    a(f"s_add_u32 s13, s13, s{S_WAVE}")
    a("s_sub_u32 s13, s13, 3")
    a("s_lshl_b32 s13, s13, 7")
    a(f"buffer_load_dword v{dst}, v2, {srd(SRD_WQKV)}, s13 offen")
    a("s_branch L_tt_done")
    a("s_branch L_tt_done")
    a("L_tt_w3:")
    a("s_mul_i32 s10, s2, 72")
    a(f"s_sub_u32 s11, s{S_WAVE}, 6")
    a("s_mul_i32 s11, s11, 36")
    a("s_add_u32 s10, s10, s11")
    a("s_lshl_b32 s10, s10, 7")
    a("v_lshlrev_b32 v2, 7, v0")
    a("v_add_u32 v2, s10, v2")
    a(f"v_subrev_u32 v3, {1792*1024}, v2")
    a("s_mov_b32 exec_hi, 0xf")
    a(f"buffer_load_dword v{dst}, v2, {srd(SRD_WD)}, 0 offen")
    a(f"buffer_load_dword v{dst}, v3, {srd(SRD_WO)}, 0 offen")
    a("s_mov_b64 exec, -1")
    a("L_tt_done:")

def c_touch_w3(a, q, dst):
    tag = f"tw3_{q}"
    a(f"s_cmp_eq_u32 s{S_WAVE}, 0")
    a(f"s_cbranch_scc1 L_{tag}_skip")
    a(f"s_and_b32 s10, s{S_J}, 3")
    a("s_mul_i32 s11, s10, 576")
    a(f"s_sub_u32 s12, s{S_WAVE}, 1")
    a("s_mul_i32 s12, s12, 192")
    a("s_add_u32 s11, s11, s12")
    a(f"s_add_u32 s11, s11, {64*q}")
    a(f"s_lshl_b32 s13, s{S_FCB}, 7")
    a(f"v_lshlrev_b32 v{V_T}, 10, v0")
    a("s_cmp_lt_u32 s11, 1792")
    a(f"s_cbranch_scc0 L_{tag}_wo")
    a("s_lshl_b32 s11, s11, 10")
    a("s_add_u32 s13, s13, s11")
    a(f"buffer_load_dword v{dst}, v{V_T}, {srd(SRD_WD)}, s13 offen")
    a(f"s_branch L_{tag}_skip")
    a(f"L_{tag}_wo:")
    a("s_sub_u32 s11, s11, 1792")
    a("s_lshl_b32 s11, s11, 10")
    a("s_add_u32 s13, s13, s11")
    a(f"buffer_load_dword v{dst}, v{V_T}, {srd(SRD_WO)}, s13 offen")
    a(f"L_{tag}_skip:")

class Pass:
    def __init__(self, a, tiles, swap, acc0, first_stage, nstages, kps, frsets, loadx=False):
        self.a, self.tiles, self.swap, self.acc0 = a, tiles, swap, acc0
        self.fs, self.ns, self.kps, self.frsets, self.loadx = first_stage, nstages, kps, frsets, loadx
        self.nks = nstages * kps
    def reads(self, ks, tl, withx):
        a = self.a
        if os.environ.get("NOC"): return 0
        s = self.fs + ks // self.kps; kl = ks % self.kps
        it, _ = stage_info(s)
        base = a.c_agw.off(a, blk_addr(it)) + kl * 2048
        fs = self.frsets[ks & 1]
        n = 0
        if withx and self.loadx:
            xb = a.c_agx.off(a, blk_addr(item_of('X', s)))
            a(f"ds_read_b128 {vr(VX+4*ks,4)}, v{V_AX+kl} offset:{xb}"); n += 1
        for t in tl:
            k, idx, imm = self.tiles[t]
            av = (V_AP if k == 'P' else V_AQ) + idx
            a(f"ds_read_b64_tr_b16 {vr(fs+4*t,2)}, v{av} offset:{base+imm}")
            a(f"ds_read_b64_tr_b16 {vr(fs+4*t+2,2)}, v{av} offset:{base+imm+512}")
            n += 2
        return n
    def entry(self):
        self.a("s_barrier")
        self.reads(0, range(len(self.tiles)), True)
    def body(self, first_reads_done_waited=False, pre_barrier=None, post_barrier=None, kstep_hook=None):
        a = self.a; T = len(self.tiles); NB_LAST = 14
        for ks in range(self.nks):
            nxt = ks + 1
            has_next = nxt < self.nks
            snext = self.fs + nxt // self.kps
            boundary = has_next and (nxt % self.kps == 0) and snext <= NB_LAST
            fs = self.frsets[ks & 1]
            if boundary:
                a("s_waitcnt lgkmcnt(0)")
                if pre_barrier: pre_barrier(snext)
                a("s_barrier")
                if STAMPS == 2: stamp(a, 13 + snext, 12, 13)
                if post_barrier: post_barrier(snext)
            if kstep_hook: kstep_hook(ks)
            half = (T + 1) // 2
            issued_next = 0
            for t in range(T):
                if not boundary and not (ks == 0 and first_reads_done_waited):
                    n_after = 2 * (T - 1 - t) + issued_next
                    a(f"s_waitcnt lgkmcnt({min(n_after, 15)})")
                acc = vr(self.acc0 + 16 * t, 16)
                c = acc if ks > 0 else "0"
                x = vr(VX + 4 * ks, 4); w = vr(fs + 4 * t, 4)
                if os.environ.get("NOC") or os.environ.get("NOMFMA"): pass
                elif self.swap: a(f"v_mfma_f32_32x32x16_bf16 {acc}, {x}, {w}, {c}")
                else: a(f"v_mfma_f32_32x32x16_bf16 {acc}, {w}, {x}, {c}")
                if has_next:
                    if t == 0: issued_next += self.reads(nxt, range(0, half), True)
                    elif t == 1: issued_next += self.reads(nxt, range(half, T), False)

def epi_common(a, E, tile0, ntiles):
    a(f"v_and_b32 v{V_T}, 31, v0")
    a(f"s_lshl_b32 s10, s{S_WAVE}, 5")
    a(f"v_add_u32 v{V_T+1}, s10, v{V_T}")
    a(f"v_lshlrev_b32 v{V_T+1}, 4, v{V_T+1}")
    a(f"ds_read_b128 {vr(E,4)}, v{V_T+1} offset:{LDS_ST}")
    a(f"v_lshlrev_b32 v{V_T}, 4, v0")
    a._cs_tile0 = tile0
    for t in range(min(2, ntiles)):
        a(f"ds_read_b128 {vr(E+8+4*(t&1),4)}, v{V_T} offset:{LDS_CS + (tile0+t)*1024}")
    a._cs_n = ntiles
    a(f"s_waitcnt lgkmcnt({min(2, ntiles)})")
    for r in range(4): a(f"v_mov_b32 v{E+4+r}, v{E}")

def epi_meancorr(a, E, t, acc, swap):
    nt = a._cs_n
    a(f"s_waitcnt lgkmcnt({1 if t + 1 < nt else 0})")
    A = vr(acc, 16); F = vr(E + 8 + 4 * (t & 1), 4)
    if swap: a(f"v_mfma_f32_32x32x16_bf16 {A}, {vr(E+4,4)}, {F}, {A}")
    else: a(f"v_mfma_f32_32x32x16_bf16 {A}, {F}, {vr(E+4,4)}, {A}")
    if t + 2 < nt:
        a(f"ds_read_b128 {F}, v{V_T} offset:{LDS_CS + (a._cs_tile0+t+2)*1024}")

def epi_pair_unit(a, acc, unit_sgpr, tile0, E):
    epi_common(a, E, tile0, 4)
    for t in range(4): epi_meancorr(a, E, t, acc + 16 * t, False)
    a(f"v_mul_f32 v{E+3}, {f32bits(-LOG2E):#x}, v{E+1}")
    a(f"s_lshl_b32 s13, s{S_RB}, 2")
    a(f"s_add_u32 s13, s13, s{S_WAVE}")
    a(f"s_mul_i32 s13, s13, {ACT_RT}")
    a(f"s_lshl_b32 s14, s{unit_sgpr}, 12")
    a("s_add_u32 s13, s13, s14")
    a(f"s_add_u32 s13, s13, {WS_ACT}")
    for j in range(4):
        A = acc + 16 * j
        for r in range(8): a(f"v_mul_f32 v{A+r}, v{A+r}, v{E+3}")
        for r in range(8): a(f"v_exp_f32 v{A+r}, v{A+r}")
        for r in range(8): a(f"v_fma_f32 v{A+r}, v{A+r}, v{E+2}, v{E+2}")
        for r in range(8): a(f"v_rcp_f32 v{A+r}, v{A+r}")
        for r in range(8): a(f"v_mul_f32 v{A+r}, v{A+r}, v{A+8+r}")
        for r in range(4): a(f"v_cvt_pk_bf16_f32 v{A+8+r}, v{A+2*r}, v{A+2*r+1}")
        a(f"buffer_store_dwordx4 {vr(A+8,4)}, v{V_ST}, {srd(SRD_WS)}, s13 offen offset:{j*1024} sc1")

def qk_lane_off(a, dst):
    a(f"v_and_b32 v{dst}, 31, v0")
    a(f"v_lshlrev_b32 v{dst}, 5, v{dst}")
    a(f"v_lshrrev_b32 v{V_T}, 5, v0")
    a(f"v_lshlrev_b32 v{V_T}, 4, v{V_T}")
    a(f"v_add_u32 v{dst}, v{dst}, v{V_T}")

def epi_n_units(a, acc, unit_sgprs, tile0, E):
    nt = 2 * len(unit_sgprs)
    epi_common(a, E, tile0, nt)
    for t in range(nt): epi_meancorr(a, E, t, acc + 16 * t, False)
    qk_lane_off(a, V_T + 2)
    for ui, us in enumerate(unit_sgprs):
        a(f"s_mov_b32 s12, {f32bits(QSCALE):#x}")
        a(f"s_cmp_lt_u32 s{us}, 8")
        a("s_cselect_b32 s12, s12, 1.0")
        a(f"v_mul_f32 v{E+3}, s12, v{E+1}")
        a(f"s_lshl_b32 s13, s{us}, 18")
        a(f"s_lshl_b32 s14, s{S_RB}, 12")
        a("s_add_u32 s13, s13, s14")
        a(f"s_lshl_b32 s14, s{S_WAVE}, 10")
        a("s_add_u32 s13, s13, s14")
        for t in range(2):
            A = acc + 16 * (2 * ui + t)
            for r in range(16): a(f"v_mul_f32 v{A+r}, v{A+r}, v{E+3}")
            for r in range(8): a(f"v_cvt_pk_bf16_f32 v{A+r}, v{A+2*r}, v{A+2*r+1}")
            a(f"buffer_store_dwordx4 {vr(A,4)}, v{V_T+2}, {srd(SRD_WS)}, s13 offen sc1")
            a("s_add_u32 s13, s13, 65536")
            a(f"buffer_store_dwordx4 {vr(A+4,4)}, v{V_T+2}, {srd(SRD_WS)}, s13 offen sc1")
            a("s_add_u32 s13, s13, 65536")

def epi_v_unit(a, acc, unit_sgpr, tile0, E):
    epi_common(a, E, tile0, 2)
    for t in range(2): epi_meancorr(a, E, t, acc + 16 * t, True)
    a(f"v_lshrrev_b32 v{V_T}, 5, v0")
    a(f"v_lshlrev_b32 v{V_T}, 4, v{V_T}")
    a(f"s_lshl_b32 s10, s{S_WAVE}, 7")
    a(f"v_add_u32 v{V_T}, s10, v{V_T}")
    R = ACCX
    for q in range(4): a(f"ds_read_b128 {vr(R+4*q,4)}, v{V_T} offset:{LDS_RS + q*32}")
    a(f"v_and_b32 v{V_T+2}, 15, v0")
    a(f"v_lshlrev_b32 v{V_T+2}, 5, v{V_T+2}")
    a(f"v_lshrrev_b32 v{V_T+3}, 5, v0")
    a(f"v_lshlrev_b32 v{V_T+3}, 4, v{V_T+3}")
    a(f"v_add_u32 v{V_T+2}, v{V_T+2}, v{V_T+3}")
    a(f"v_lshrrev_b32 v{V_T+3}, 4, v0")
    a(f"v_and_b32 v{V_T+3}, 1, v{V_T+3}")
    a(f"v_lshlrev_b32 v{V_T+3}, 16, v{V_T+3}")
    a(f"v_add_u32 v{V_T+2}, v{V_T+2}, v{V_T+3}")
    a(f"s_lshl_b32 s13, s{unit_sgpr}, 18")
    a(f"s_lshl_b32 s14, s{S_RB}, 12")
    a("s_add_u32 s13, s13, s14")
    a(f"s_lshl_b32 s14, s{S_WAVE}, 10")
    a("s_add_u32 s13, s13, s14")
    a("s_waitcnt lgkmcnt(0)")
    for t in range(2):
        A = acc + 16 * t
        for r in range(16): a(f"v_mul_f32 v{A+r}, v{A+r}, v{R+r}")
        for r in range(8): a(f"v_cvt_pk_bf16_f32 v{A+r}, v{A+2*r}, v{A+2*r+1}")
        a(f"buffer_store_dwordx4 {vr(A,4)}, v{V_T+2}, {srd(SRD_WS)}, s13 offen sc1")
        a(f"buffer_store_dwordx4 {vr(A+4,4)}, v{V_T+2}, {srd(SRD_WS)}, s13 offen offset:512 sc1")
        a("s_add_u32 s13, s13, 131072")

def c_phaseA(a):
    fin_ids(a)
    if not os.environ.get("NOPREP"): c_prep(a)
    epoch_ready(a)
    c_setup(a)
    stamp(a, 1, 12, 13)
    P3 = Pass(a, pass_tiles('P'), False, ACCX, 12, 8, 4, (FR0, FR1))
    def pre1(sn):
        if sn == 4: a("s_waitcnt vmcnt(0)")
    def post1(sn):
        if sn == 4:
            a(f"s_cmp_eq_u32 s{S_WAVE}, 3")
            a("s_cbranch_scc0 L_tw3_ep")
            a(f"v_mov_b32 v{V_T}, 0")
            a("v_mov_b32 v49, 1")
            a("s_mov_b64 exec, 1")
            a(f"buffer_atomic_add v49, v{V_T}, {srd(SRD_DBG)}, 0 offen sc0 sc1")
            a("s_mov_b64 exec, -1")
            a("L_tw3_ep:")
        if sn == 4:
            a(f"s_cmp_eq_u32 s{S_WAVE}, 0")
            a("s_cbranch_scc0 L_tw3_f1")
            flag_set(a, 1, V_T, V_T + 1)
            a("L_tw3_f1:")

    a(f"s_cmp_eq_u32 s{S_I}, 3")
    a("s_cbranch_scc1 L_c_p1B")
    st = (a.c_agw.bias, a.c_agx.bias)
    import re
    for var in ('A', 'B'):
        if var == 'B':
            a()if False else None
            a("L_c_p1B:"); a.forget_waits(); a.c_agw.bias, a.c_agx.bias = st
        n0 = len(a.lines)
        P1 = Pass(a, pass_tiles('P') if var == 'A' else pass_tiles('Q', 2), False, ACCX, 0, 8, 4, (FR0, FR1), loadx=True)
        P1.entry()
        P1.body(pre_barrier=lambda sn: (pre1(sn), post1(sn - 1)))
        for k in range(n0, len(a.lines)): a.lines[k] = re.sub(r"L_tw3_(\w+)", lambda m: f"L_tw3{var}_{m.group(1)}", a.lines[k])
        if var == 'A': a("s_branch L_c_p1done")
    a("L_c_p1done:")
    stamp(a, 2, 12, 13)
    a("s_waitcnt vmcnt(0)")
    a(f"s_cmp_eq_u32 s{S_WAVE}, 3")
    a("s_cbranch_scc0 L_c_noep2")
    a("v_readfirstlane_b32 s10, v49")
    a("s_cmp_eq_u32 s10, 255")
    a("s_cbranch_scc0 L_c_noep2")
    a("s_add_u32 s10, s32, 1")
    a(f"v_mov_b32 v{V_T}, s10")
    a(f"v_mov_b32 v{V_T+1}, {WS_FLAG + FL_EPOCH*128}")
    a("s_mov_b64 exec, 1")
    a(f"buffer_store_dword v{V_T}, v{V_T+1}, {srd(SRD_WS)}, 0 offen sc1")
    a("s_mov_b64 exec, -1")
    a("L_c_noep2:")
    a("s_barrier")
    def post2(sn):
        if sn in (9, 10, 11) and os.environ.get("W3T"): c_touch_w3(a, sn - 9, 8)
    a(f"s_cmp_lt_u32 s{S_I}, 2")
    a("s_cbranch_scc1 L_c_p2V")
    st = (a.c_agw.bias, a.c_agx.bias)
    for var in ('N', 'V'):
        if var == 'V':
            a("L_c_p2V:"); a.forget_waits(); a.c_agw.bias, a.c_agx.bias = st
        n0 = len(a.lines)
        P2 = Pass(a, pass_tiles('Q', 1), var == 'V', ACCY, 8, 4, 8, (FR0, FR0 + 8))
        P2.reads(0, range(2), False)
        P2.body(pre_barrier=lambda sn: post2(sn))
        for k in range(n0, len(a.lines)): a.lines[k] = re.sub(r"L_tw3_(\w+)", lambda m: f"L_tw3{var}_{m.group(1)}", a.lines[k])
        if var == 'N': a("s_branch L_c_p2done")
    a("L_c_p2done:")
    stamp(a, 4, 12, 13)
    a("s_barrier")
    a(f"s_cmp_eq_u32 s{S_I}, 3")
    a("s_cbranch_scc1 L_c_e1B")
    epi_pair_unit(a, ACCX, S_U_EARLY, 0, FR0)
    a("s_branch L_c_e1done")
    a("L_c_e1B:")
    a(f"s_lshl_b32 s93, s{S_M}, 2")
    a("s_add_u32 s93, s93, 1")
    a("s_add_u32 s94, s93, 1")
    epi_n_units(a, ACCX, [93, 94], 0, FR0)
    a("L_c_e1done:")
    a.nop(16)
    stamp(a, 3, 12, 13)
    a(f"s_cmp_lt_u32 s{S_I}, 2")
    a("s_cbranch_scc1 L_c_e2V")
    epi_n_units(a, ACCY, [S_U_Q2], 4, FR0)
    a("s_branch L_c_e2done")
    a("L_c_e2V:")
    epi_v_unit(a, ACCY, S_U_Q2, 4, FR0)
    a("L_c_e2done:")
    a.nop(16)
    stamp(a, 5, 12, 13)
    P3.reads(0, range(4), False)
    F2K = int(os.environ.get("F2K", "0"))
    def pre3(snext):
        if snext == 14 and not F2K: a("s_waitcnt vmcnt(0)")
    def post3(snext):
        if snext == 14 and not F2K:
            a(f"s_cmp_eq_u32 s{S_WAVE}, 0")
            a("s_cbranch_scc0 L_c_nof2")
            flag_set(a, 2, V_T, V_T + 1)
            a("L_c_nof2:")
    def mid3(ks):
        if F2K and ks == F2K:
            a("s_waitcnt vmcnt(0)")
            lds_arrive_last(a, LDS_CNT + 48, V_T, V_T + 1, "c_f2")
            flag_set(a, 2, V_T, V_T + 1)
            a("L_c_f2_skip:")
    P3.body(pre_barrier=pre3, post_barrier=post3, kstep_hook=mid3)
    stamp(a, 6, 12, 13)
def flag_store(a, line_sgpr_expr, stage, t0, t1):
    a(f"s_add_u32 s11, s{S_TAG}, {stage}")
    a(f"v_mov_b32 v{t0}, s11")
    a(f"v_mov_b32 v{t1}, s10")
    a(f"s_mov_b32 s11, {WS_FLAG}")
    a("s_mov_b64 exec, 1")
    a(f"buffer_store_dword v{t0}, v{t1}, {srd(SRD_WS)}, s11 offen sc1")
    a("s_mov_b64 exec, -1")

def flag_set(a, stage, t0, t1):
    if stage == 1:
        a(f"s_lshl_b32 s10, s{S_RB}, 7")
        a(f"s_lshl_b32 s12, s{S_CG}, 2")
        a("s_add_u32 s10, s10, s12")
        a(f"s_add_u32 s10, s10, {FL_1R*128}")
        flag_store(a, None, 1, t0, t1)
        a(f"s_lshl_b32 s10, s{S_CG}, 7")
        a(f"s_lshl_b32 s12, s{S_RB}, 2")
        a("s_add_u32 s10, s10, s12")
        a(f"s_add_u32 s10, s10, {FL_1C*128}")
        flag_store(a, None, 1, t0, t1)
    elif stage in (2, 3):
        a(f"s_lshl_b32 s10, s{S_RB}, 7")
        a(f"s_lshl_b32 s12, s{S_CG}, 2")
        a("s_add_u32 s10, s10, s12")
        a(f"s_add_u32 s10, s10, {(FL_2 if stage == 2 else FL_3)*128}")
        flag_store(a, None, stage, t0, t1)
    else:
        a(f"s_lshr_b32 s10, s{S_RB}, 1")
        a("s_lshl_b32 s10, s10, 7")
        a(f"s_and_b32 s12, s{S_RB}, 1")
        a("s_lshl_b32 s12, s12, 4")
        a(f"s_add_u32 s12, s12, s{S_CG}")
        a("s_lshl_b32 s12, s12, 2")
        a("s_add_u32 s10, s10, s12")
        a(f"s_add_u32 s10, s10, {FL_4*128}")
        flag_store(a, None, 4, t0, t1)

def flag_wait(a, nlanes, stage, t0, voff, tag, sleep=int(os.environ.get('FSLEEP', '4'))):
    if NOFLAG: return
    a(f"s_add_u32 s13, s{S_TAG}, {stage}")
    a(f"s_mov_b32 s14, {WS_FLAG}")
    a("s_mov_b32 s15, 0")
    a(f"L_{tag}:")
    a("s_add_u32 s15, s15, 1")
    a("s_cmp_gt_u32 s15, 100000")
    a(f"s_cbranch_scc1 L_{tag}_ok")
    a(f"buffer_load_dword v{t0}, v{voff}, {srd(SRD_WS)}, s14 offen sc1")
    a("s_waitcnt vmcnt(0)")
    a(f"v_cmp_ne_u32 vcc, s13, v{t0}")
    if nlanes < 64:
        if nlanes <= 32: a(f"s_and_b64 vcc, vcc, {(1 << nlanes) - 1:#x}")
    a("s_cmp_eq_u64 vcc, 0")
    a(f"s_cbranch_scc1 L_{tag}_ok")
    a(f"s_sleep {sleep}")
    a(f"s_branch L_{tag}")
    a(f"L_{tag}_ok:")

def wg_wait(a, poller_cond_sgpr, poller_val, setup_voff, nlanes, stage, cnt_off, t0, t1, tag):
    a(f"s_cmp_eq_u32 s{poller_cond_sgpr}, {poller_val}")
    a(f"s_cbranch_scc0 L_{tag}_np")
    setup_voff(t1)
    flag_wait(a, nlanes, stage, t0, t1, tag)
    lds_inc(a, cnt_off, t0, t1)
    a(f"s_branch L_{tag}_dn")
    a(f"L_{tag}_np:")
    lds_wait_count(a, cnt_off, 1, t0, t1, tag + "_l")
    a(f"L_{tag}_dn:")

def lds_arrive_last(a, cnt_off, t0, t1, tag, n=4):
    a(f"v_mov_b32 v{t0}, {cnt_off}")
    a(f"v_mov_b32 v{t1}, 1")
    a("s_mov_b64 exec, 1")
    a(f"ds_add_rtn_u32 v{t1}, v{t0}, v{t1}")
    a("s_waitcnt lgkmcnt(0)")
    a("s_mov_b64 exec, -1")
    a(f"v_readfirstlane_b32 s10, v{t1}")
    a(f"s_cmp_eq_u32 s10, {n-1}")
    a(f"s_cbranch_scc0 L_{tag}_skip")

def lds_inc(a, cnt_off, t0, t1):
    a(f"v_mov_b32 v{t0}, {cnt_off}")
    a(f"v_mov_b32 v{t1}, 1")
    a("s_mov_b64 exec, 1")
    a(f"ds_add_u32 v{t0}, v{t1}")
    a("s_mov_b64 exec, -1")

def lds_wait_count(a, cnt_off, n, t0, t1, tag):
    a(f"v_mov_b32 v{t0}, {cnt_off}")
    a("s_mov_b32 s15, 0")
    a(f"L_{tag}:")
    a("s_add_u32 s15, s15, 1")
    a("s_cmp_gt_u32 s15, 1000000")
    a(f"s_cbranch_scc1 L_{tag}_ok")
    a(f"ds_read_b32 v{t1}, v{t0}")
    a("s_waitcnt lgkmcnt(0)")
    a(f"v_readfirstlane_b32 s10, v{t1}")
    a(f"s_cmp_ge_u32 s10, {n}")
    a(f"s_cbranch_scc1 L_{tag}_ok")
    a(f"s_sleep {os.environ.get('LSLEEP', '1')}")
    a(f"s_branch L_{tag}")
    a(f"L_{tag}_ok:")

AT_Q, AT_K, AT_V, AT_S, AT_O, AT_NM, AT_BD, AT_BO, AT_P, AT_T = 8, 16, 52, 124, 172, 188, 204, 220, 236, 2
S_QB0, S_HEAD = 93, 94
BIG = 1.0e30

def at_setup(a):
    a(f"s_and_b32 s10, s{S_RB}, 1")
    a("s_lshl_b32 s10, s10, 4")
    a(f"s_add_u32 s{S_HEAD}, s10, s{S_CG}")
    a(f"s_lshr_b32 s10, s{S_RB}, 1")
    a("s_lshl_b32 s10, s10, 3")
    a(f"s_lshl_b32 s11, s{S_HW}, 1")
    a(f"s_add_u32 s{S_QB0}, s10, s11")
    a("v_and_b32 v2, 31, v0")
    a("v_lshrrev_b32 v4, 5, v0")
    a("v_lshlrev_b32 v5, 4, v4")
    a("v_lshlrev_b32 v3, 5, v2")
    a("v_add_u32 v1, v3, v5")
    a("v_lshlrev_b32 v4, 2, v4")
    a("v_sub_u32 v4, v2, v4")
    a(f"v_mov_b32 v5, {f32bits(-BIG):#x}")
    for r in range(16):
        kr = (r & 3) + 8 * (r >> 2)
        a(f"v_cmp_le_i32 vcc, {kr}, v4")
        a(f"v_cndmask_b32_e64 v{AT_BD+r}, v5, 0, vcc")
        a(f"v_cndmask_b32_e64 v{AT_BO+r}, 0, v5, vcc")
    for r in range(72): a(f"v_mov_b32 v{AT_V+r}, 0x3f803f80")
    a("s_mov_b32 s96, 0x0000ffff")
    a("s_mov_b32 s97, 0x0000ffff")

def at_load_kv(a, slot, j, what="kv"):
    a(f"s_add_i32 s10, s{S_QB0}, {j-8}")
    a("s_max_i32 s10, s10, 0")
    a("s_lshl_b32 s10, s10, 10")
    a(f"s_lshl_b32 s11, s{S_HEAD}, 16")
    a("s_add_u32 s10, s10, s11")
    if "k" in what:
        a(f"s_add_u32 s11, s10, {WS_K}")
        a(f"buffer_load_dwordx4 {vr(AT_K+4*slot,4)}, v1, {srd(SRD_WS)}, s11 offen sc1")
    if "v" in what:
        a(f"s_add_u32 s11, s10, {WS_V}")
        a("s_mov_b64 exec, s[96:97]")
        a(f"buffer_load_dwordx4 {vr(AT_V+8*slot,4)}, v1, {srd(SRD_WS)}, s11 offen sc1")
        a(f"buffer_load_dwordx4 {vr(AT_V+8*slot+4,4)}, v1, {srd(SRD_WS)}, s11 offen offset:512 sc1")
        a("s_mov_b64 exec, -1")

def at_loads(a):
    a(f"s_lshl_b32 s11, s{S_HEAD}, 16")
    a(f"s_lshl_b32 s10, s{S_QB0}, 10")
    a("s_add_u32 s12, s10, s11")
    a(f"buffer_load_dwordx4 {vr(AT_Q,4)}, v1, {srd(SRD_WS)}, s12 offen sc1")
    for j in range(9): at_load_kv(a, j, j, "k")
    for j in range(9): at_load_kv(a, j, j, "v")
    a(f"buffer_load_dwordx4 {vr(AT_Q+4,4)}, v1, {srd(SRD_WS)}, s12 offen offset:1024 sc1")

def at_item(a, it, fast, tag, mid=None, dry=False):
    q = vr(AT_Q + 4 * it, 4)
    slot = lambda j: (j + it) % 9
    K = lambda j: vr(AT_K + 4 * slot(j), 4)
    V1 = lambda j: vr(AT_V + 8 * slot(j), 4)
    V2 = lambda j: vr(AT_V + 8 * slot(j) + 4, 4)
    S = lambda b: AT_S + 16 * b
    M = AT_T
    if not fast:
        a(f"s_add_u32 s10, s{S_QB0}, {it}")
        a("s_sub_i32 s95, 8, s10")
        a("s_max_i32 s95, s95, 0")
    a(f"v_mov_b32 v{M}, {f32bits(-BIG):#x}")
    cop = lambda j: vr(AT_BO, 16) if j == 0 else (vr(AT_BD, 16) if j == 8 else "0")
    for qq in range(1, 4): a(f"v_mov_b32 v{M+qq}, {f32bits(-BIG):#x}")
    def maxops(b):
        for r in range(0, 16, 2):
            mm = M + ((r // 2) & 3)
            a(f"v_max3_f32 v{mm}, v{S(b)+r}, v{S(b)+r+1}, v{mm}")
    if fast:
        a(f"s_add_u32 s10, s{S_QB0}, {it}")
        a("s_sub_i32 s95, 8, s10")
        a("s_max_i32 s95, s95, 0")
        a("s_cmp_eq_u32 s95, 0")
        a(f"s_cbranch_scc0 L_{tag}_d1")
        a(f"v_mfma_f32_32x32x16_bf16 {vr(S(0),16)}, {K(0)}, {q}, {cop(0)}")
        a(f"v_mfma_f32_32x32x16_bf16 {vr(S(1),16)}, {K(1)}, {q}, {cop(1)}")
        for j in range(9):
            a(f"L_{tag}_e1_{j}:")
            if j + 2 == 8 and it == 1: a("s_waitcnt vmcnt(3)")
            if j + 2 < 9: a(f"v_mfma_f32_32x32x16_bf16 {vr(S((j+2)%3),16)}, {K(j+2)}, {q}, {cop(j+2)}")
            maxops(j % 3)
        stubs1 = True
    else:
        for j in range(9):
            a(f"s_cmp_gt_i32 s95, {j}")
            a(f"s_cbranch_scc1 L_{tag}_p1_{j}")
            a(f"v_mfma_f32_32x32x16_bf16 {vr(S(0),16)}, {K(j)}, {q}, {cop(j)}")
            maxops(0)
            a(f"L_{tag}_p1_{j}:")
            a.nop(8)
    if mid: mid()
    a(f"v_max_f32 v{M}, v{M}, v{M+1}")
    a(f"v_max_f32 v{M+2}, v{M+2}, v{M+3}")
    a(f"v_max_f32 v{M}, v{M}, v{M+2}")
    a(f"v_mov_b32 v{M+1}, v{M}")
    a(f"v_permlane32_swap_b32 v{M}, v{M+1}")
    a(f"v_max_f32 v{M}, v{M}, v{M+1}")
    a(f"v_sub_f32 v{M}, 0, v{M}")
    for r in range(16): a(f"v_mov_b32 v{AT_NM+r}, v{M}")
    def qk(j, b):
        if j == 0 or j == 8:
            bias = AT_BO if j == 0 else AT_BD
            for r in range(16): a(f"v_add_f32 v{S(b)+r}, v{bias+r}, v{M}")
            a(f"v_mfma_f32_32x32x16_bf16 {vr(S(b),16)}, {K(j)}, {q}, {vr(S(b),16)}")
        else:
            a(f"v_mfma_f32_32x32x16_bf16 {vr(S(b),16)}, {K(j)}, {q}, {vr(AT_NM,16)}")
    def soft(j, b, pb):
        for r in range(16): a(f"v_exp_f32 v{S(b)+r}, v{S(b)+r}")
        for r in range(8): a(f"v_cvt_pk_bf16_f32 v{AT_P+8*pb+r}, v{S(b)+2*r}, v{S(b)+2*r+1}")
    def pv(j, pb, first):
        c = "0" if first else vr(AT_O, 16)
        a(f"v_mfma_f32_32x32x16_bf16 {vr(AT_O,16)}, {V1(j)}, {vr(AT_P+8*pb,4)}, {c}")
        a(f"v_mfma_f32_32x32x16_bf16 {vr(AT_O,16)}, {V2(j)}, {vr(AT_P+8*pb+4,4)}, {vr(AT_O,16)}")
    if fast:
        for r in range(16): a(f"v_mov_b32 v{AT_O+r}, 0")
        for r in range(16): a(f"v_mov_b32 v{AT_P+r}, 0")
        a("s_cmp_eq_u32 s95, 0")
        a(f"s_cbranch_scc0 L_{tag}_d2")
        qk(0, 0); qk(1, 1)
        for j in range(9):
            a(f"L_{tag}_e2_{j}:")
            if j == 8 and it == 0:
                at_load_kv(a, 0, 9)
            b = j % 3; pb = j & 1
            for r in range(16):
                a(f"v_exp_f32 v{S(b)+r}, v{S(b)+r}")
                if r == 3 and j > 0:
                    a(f"v_mfma_f32_32x32x16_bf16 {vr(AT_O,16)}, {V1(j-1)}, {vr(AT_P+8*(1-pb),4)}, {vr(AT_O,16)}")
                if r == 8 and j > 0:
                    a(f"v_mfma_f32_32x32x16_bf16 {vr(AT_O,16)}, {V2(j-1)}, {vr(AT_P+8*(1-pb)+4,4)}, {vr(AT_O,16)}")
                if r == 13 and j + 2 < 9 and j + 2 != 8:
                    qk(j + 2, (j + 2) % 3)
            for r in range(8): a(f"v_cvt_pk_bf16_f32 v{AT_P+8*pb+r}, v{S(b)+2*r}, v{S(b)+2*r+1}")
            if j + 2 == 8: qk(8, 8 % 3)
        pv(8, 8 & 1, False)
    else:
        for r in range(16): a(f"v_mov_b32 v{AT_O+r}, 0")
        for j in range(9):
            a(f"s_cmp_gt_i32 s95, {j}")
            a(f"s_cbranch_scc1 L_{tag}_p2_{j}")
            qk(j, 0); soft(j, 0, 0); pv(j, 0, False)
            a(f"L_{tag}_p2_{j}:")
            a.nop(16)
    a(f"v_rcp_f32 v{M}, v{AT_O+8}")
    for r in range(8): a(f"v_mul_f32 v{AT_O+r}, v{AT_O+r}, v{M}")
    for r in range(4): a(f"v_cvt_pk_bf16_f32 v{AT_P+r}, v{AT_O+2*r}, v{AT_O+2*r+1}")
    if not fast: at_store(a, it)
    if fast:
        a(f"s_branch L_{tag}_end")
        save = (dict(a.mfma_w), dict(a.valu_w))
        a(f"L_{tag}_d1:")
        if it == 1: a("s_waitcnt vmcnt(3)")
        for jj in range(1, 9):
            a(f"s_cmp_eq_u32 s95, {jj}")
            a(f"s_cbranch_scc1 L_{tag}_s1_{jj}")
        for jj in range(1, 9):
            a(f"L_{tag}_s1_{jj}:")
            a(f"v_mfma_f32_32x32x16_bf16 {vr(S(jj%3),16)}, {K(jj)}, {q}, {cop(jj)}")
            if jj + 1 < 9: a(f"v_mfma_f32_32x32x16_bf16 {vr(S((jj+1)%3),16)}, {K(jj+1)}, {q}, {cop(jj+1)}")
            a.nop(16)
            a(f"s_branch L_{tag}_e1_{jj}")
        a(f"L_{tag}_d2:")
        for jj in range(1, 9):
            a(f"s_cmp_eq_u32 s95, {jj}")
            a(f"s_cbranch_scc1 L_{tag}_s2_{jj}")
        for jj in range(1, 9):
            a(f"L_{tag}_s2_{jj}:")
            a.nop(8)
            qk(jj, jj % 3)
            if jj + 1 < 9: qk(jj + 1, (jj + 1) % 3)
            a.nop(16)
            a(f"s_branch L_{tag}_e2_{jj}")
        a(f"L_{tag}_end:")
        a.nop(4)

def at_store(a, it):
    M = AT_T
    a(f"s_add_u32 s10, s{S_QB0}, {it}")
    a(f"s_mul_i32 s10, s10, {ACT_RT}")
    a(f"s_add_u32 s11, s{S_HEAD}, 112")
    a("s_lshl_b32 s11, s11, 10")
    a("s_add_u32 s10, s10, s11")
    a(f"s_add_u32 s10, s10, {WS_ACT}")
    a(f"v_lshlrev_b32 v{M+1}, 4, v0")
    a(f"buffer_store_dwordx4 {vr(AT_P,4)}, v{M+1}, {srd(SRD_WS)}, s10 offen sc1")

S_IT = 89
def attention(a):
    if os.environ.get("PRIO_AT"): a(f"s_setprio {os.environ['PRIO_AT']}")
    at_setup(a)
    def voff_at(t1):
        a(f"s_and_b32 s10, s{S_RB}, 0xfffffffe")
        a("s_sub_i32 s10, s10, 2")
        a("s_max_i32 s10, s10, 0")
        a(f"s_add_u32 s10, s10, {FL_2}")
        a("s_lshl_b32 s10, s10, 7")
        if os.environ.get("FINE"):
            a(f"s_lshr_b32 s11, s{S_HEAD}, 2")
            def ncg(dst, unit_sgpr):
                a(f"s_lshr_b32 s14, s{unit_sgpr}, 2")
                a("s_lshl_b32 s14, s14, 2")
                a(f"s_and_b32 s15, s{unit_sgpr}, 3")
                a("s_cmp_eq_u32 s15, 0")
                a("s_cselect_b32 s15, 2, 3")
                a(f"s_add_u32 s{dst}, s14, s15")
            ncg(12, 11)
            a("s_add_u32 s13, s11, 8")
            ncg(13, 13)
            a("s_lshr_b32 s14, s11, 1")
            a("s_lshl_b32 s14, s14, 2")
            a("s_and_b32 s15, s11, 1")
            a("s_add_u32 s11, s14, s15")
            a("v_and_b32 v6, 3, v0")
            a(f"v_mov_b32 v{t1}, s11")
            a("v_cmp_eq_u32 vcc, 0, v6")
            a("v_mov_b32 v5, s12")
            a(f"v_cndmask_b32 v{t1}, v{t1}, v5, vcc")
            a("v_cmp_eq_u32 vcc, 1, v6")
            a("v_mov_b32 v5, s13")
            a(f"v_cndmask_b32 v{t1}, v{t1}, v5, vcc")
            a(f"v_lshlrev_b32 v{t1}, 2, v{t1}")
            a("v_lshrrev_b32 v6, 2, v0")
            a("v_lshlrev_b32 v6, 7, v6")
            a(f"v_add_u32 v{t1}, v{t1}, v6")
            a(f"v_add_u32 v{t1}, s10, v{t1}")
        else:
            a(f"v_lshrrev_b32 v{t1}, 4, v0")
            a(f"v_lshlrev_b32 v{t1}, 7, v{t1}")
            a("v_and_b32 v6, 15, v0")
            a("v_lshlrev_b32 v6, 2, v6")
            a(f"v_add_u32 v{t1}, v{t1}, v6")
            a(f"v_add_u32 v{t1}, s10, v{t1}")
    a("L_at_dry_ret:")
    a.forget_waits()
    a.nop(16)
    wg_wait(a, S_HW, 2, voff_at, 16 if os.environ.get("FINE") else 64, 2, LDS_CNT + 28, 6, 7, "fw_at")
    stamp(a, 2, 6, 7)
    lstamp(a, 5)
    at_loads(a)
    lds_inc(a, LDS_CNT + 52, 6, 7)
    lstamp(a, 6)
    a("s_waitcnt vmcnt(19)")
    lstamp(a, 7)
    at_item(a, 0, True, "f0", mid=lambda: a("s_waitcnt vmcnt(0)"))
    at_store(a, 0)
    lstamp(a, 10)
    a.vm = [x for x in a.vm if False]
    at_item(a, 1, True, "f1", mid=lambda: a("s_waitcnt vmcnt(1)"))
    at_store(a, 1)
    a("L_at_done:")
    lstamp(a, 12)
    stamp(a, 4, 6, 7)
    a("s_waitcnt vmcnt(0)")
    lstamp(a, 13)
    lds_arrive_last(a, LDS_CNT + 4, 6, 7, "at_fl")
    flag_set(a, 4, 6, 7)
    a("L_at_fl_skip:")

FD = int(os.environ.get('FD', '12'))
F_ACC = 64
F_ACT = 128
F_W = 224
F_AW, F_VW, F_VA, F_T = 240, 242, 243, 244
F_RING = 24 * 1024
S_FL, S_ACTH, S_ACTO, S_WDO, S_WOO = 88, 84, 85, 82, 83

def f_ksteps():
    L = []
    for u in (0, 2, 4, 1, 3, 5, 6):
        for jj in range(4): L.append((0, 4 * u + jj))
    for hd in range(8): L.append((1, hd))
    return L

def f_setup(a):
    KQ = S_WAVE
    a(f"s_mul_i32 s{S_FL}, s{KQ}, {F_RING}")
    a(f"s_add_u32 s{S_FL}, s{S_FL}, {BLK}")
    a(f"s_mul_i32 s89, s{S_FRT}, {2*ACT_RT}")
    a(f"s_add_u32 s89, s89, {WS_ACT}")
    a(f"s_mul_i32 s10, s{KQ}, {28*1024}")
    a(f"s_add_u32 s{S_ACTH}, s89, s10")
    a(f"s_lshl_b32 s10, s{KQ}, 13")
    a(f"s_add_u32 s{S_ACTO}, s89, s10")
    a(f"s_add_u32 s{S_ACTO}, s{S_ACTO}, {112*1024}")
    a(f"s_lshl_b32 s11, s{S_FCB}, 7")
    a(f"s_mul_i32 s10, s{KQ}, {448*1024}")
    a(f"s_add_u32 s{S_WDO}, s10, s11")
    a(f"s_lshl_b32 s10, s{KQ}, 17")
    a(f"s_add_u32 s{S_WOO}, s10, s11")
    t = F_ACT
    a(f"v_lshrrev_b32 v{t}, 3, v0")
    a(f"v_lshlrev_b32 v{t}, 10, v{t}")
    a(f"v_and_b32 v{t+1}, 7, v0")
    a(f"v_lshrrev_b32 v{t+2}, 4, v0")
    a(f"v_and_b32 v{t+2}, 1, v{t+2}")
    a(f"v_lshlrev_b32 v{t+2}, 2, v{t+2}")
    a(f"v_xor_b32 v{t+1}, v{t+1}, v{t+2}")
    a(f"v_lshlrev_b32 v{t+1}, 4, v{t+1}")
    a(f"v_add_u32 v{F_VW}, v{t}, v{t+1}")
    a(f"v_lshlrev_b32 v{F_VA}, 4, v0")
    a(f"v_lshrrev_b32 v{t}, 4, v0")
    a(f"v_and_b32 v{t+1}, 1, v{t}")
    a(f"v_lshrrev_b32 v{t+2}, 1, v{t}")
    a(f"v_and_b32 v{t+3}, 15, v0")
    a(f"v_lshrrev_b32 v{t+4}, 2, v{t+3}")
    a(f"v_and_b32 v{t+5}, 3, v{t+3}")
    a(f"v_lshlrev_b32 v{t+6}, 2, v{t+2}")
    a(f"v_add_u32 v{t+6}, v{t+6}, v{t+4}")
    a(f"v_lshlrev_b32 v{t+6}, 7, v{t+6}")
    a(f"v_and_b32 v{t+7}, 1, v{t+5}")
    a(f"v_lshlrev_b32 v{t+7}, 3, v{t+7}")
    a(f"v_add_u32 v{t+6}, v{t+6}, v{t+7}")
    a(f"v_lshrrev_b32 v{t+7}, 1, v{t+5}")
    a(f"v_lshlrev_b32 v{t+7}, 4, v{t+7}")
    a(f"v_lshrrev_b32 v{t+8}, 1, v{t+4}")
    a(f"v_lshlrev_b32 v{t+8}, 6, v{t+8}")
    a(f"v_xor_b32 v{t+7}, v{t+7}, v{t+8}")
    a(f"v_lshlrev_b32 v{t+8}, 5, v{t+1}")
    a(f"v_xor_b32 v{t+7}, v{t+7}, v{t+8}")
    a(f"v_add_u32 v{t+6}, v{t+6}, v{t+7}")
    a(f"v_add_u32 v{F_AW}, s{S_FL}, v{t+6}")
    a(f"v_xor_b32 v{F_AW+1}, 64, v{F_AW}")

def f_issue_w(a, n):
    is_o, rel = f_ksteps()[n]; sl = n % FD
    if is_o: a(f"s_add_u32 s10, s{S_WOO}, {rel*16*1024}"); sr = SRD_WO
    else: a(f"s_add_u32 s10, s{S_WDO}, {rel*16*1024}"); sr = SRD_WD
    a(f"s_add_u32 m0, s{S_FL}, {sl*2048}")
    a("s_add_u32 s11, s10, 8192")
    a(f"buffer_load_dwordx4 v{F_VW}, {srd(sr)}, s10 offen lds")
    a(f"s_add_u32 m0, s{S_FL}, {sl*2048+1024}")
    a("s_nop 0")
    a(f"buffer_load_dwordx4 v{F_VW}, {srd(sr)}, s11 offen lds")

def f_issue_a(a, n):
    is_o, rel = f_ksteps()[n]; sl = n % FD
    base = S_ACTO if is_o else S_ACTH
    a(f"s_add_u32 s10, s{base}, {rel*1024}")
    a(f"s_add_u32 s11, s10, {ACT_RT}")
    a(f"buffer_load_dwordx4 {vr(F_ACT+8*sl,4)}, v{F_VA}, {srd(SRD_WS)}, s10 offen sc1")
    a(f"buffer_load_dwordx4 {vr(F_ACT+8*sl+4,4)}, v{F_VA}, {srd(SRD_WS)}, s11 offen sc1")

def f_wreads(a, n):
    sl = n % FD; fs = F_W + 8 * (n & 1)
    for t in range(2):
        a(f"ds_read_b64_tr_b16 {vr(fs+4*t,2)}, v{F_AW+t} offset:{sl*2048}")
        a(f"ds_read_b64_tr_b16 {vr(fs+4*t+2,2)}, v{F_AW+t} offset:{sl*2048+1024}")

def f_mfma(a, n):
    fs = F_W + 8 * (n & 1); sl = n % FD
    for rt in range(2):
        for t in range(2):
            acc = vr(F_ACC + 16 * (2 * rt + t), 16)
            c = acc if n > 0 else "0"
            a(f"v_mfma_f32_32x32x16_bf16 {acc}, {vr(fs+4*t,4)}, {vr(F_ACT+8*sl+4*rt,4)}, {c}")

def final_segment(a, n0, n1, NK=36):
    raise NotImplementedError

def final_gemm(a):
    NK = 36
    seg_of = lambda n: 0 if n < 12 else (1 if n < 28 else 2)
    seg_start = [0, 12, 28, 36]
    q = a.fq
    def wait_for(tags):
        idxs = [i for i, t in enumerate(q) if t in tags]
        if not idxs: return
        last = max(idxs)
        n_after = len(q) - 1 - last
        a(f"s_waitcnt vmcnt({n_after})")
        del q[:last + 1]
    def iw(n): f_issue_w(a, n); q.extend([('w', n)] * 2)
    def ia(n): f_issue_a(a, n); q.extend([('a', n)] * 2)
    a_issued = a.f_a_issued; w_issued = a.f_w_issued
    for seg in range(3):
        s0, s1 = seg_start[seg], seg_start[seg + 1]
        if seg > 0:
            def voff_f(t1, seg=seg):
                if seg == 1:
                    a(f"s_lshr_b32 s10, s{S_FRT}, 1")
                    a(f"s_add_u32 s10, s10, {FL_3}")
                else:
                    a(f"s_lshr_b32 s10, s{S_FRT}, 2")
                    a(f"s_add_u32 s10, s10, {FL_4}")
                a("s_lshl_b32 s10, s10, 7")
                a(f"v_lshlrev_b32 v{t1}, 2, v0")
                a(f"v_add_u32 v{t1}, s10, v{t1}")
            a("s_waitcnt vmcnt(0)")
            wg_wait(a, S_WAVE, 0, voff_f, 16 if seg == 1 else 32, 3 if seg == 1 else 4, LDS_CNT + 32 + 4 * seg, F_T, F_T + 1, f"fw_f{seg}")
            q.clear()
            stamp(a, 8 + seg, F_T, F_T + 1)
            q.extend([('x',)] * NST)
        while a_issued < min(s1, s0 + FD):
            ia(a_issued); a_issued += 1
        wait_for([('w', s0), ('a', s0)])
        f_wreads(a, s0)
        for n in range(s0, s1):
            if n + 1 < s1:
                wait_for([('w', n + 1), ('a', n + 1)])
                f_wreads(a, n + 1)
                a("s_waitcnt lgkmcnt(4)")
            else:
                a("s_waitcnt lgkmcnt(0)")
            f_mfma(a, n)
            if w_issued < NK and w_issued <= n + FD:
                iw(w_issued); w_issued += 1
            if a_issued < s1 and a_issued <= n + FD:
                ia(a_issued); a_issued += 1

RP = 272
def final_reduce(a):
    T = F_T
    a(f"v_and_b32 v{T}, 31, v0")
    a(f"s_movk_i32 s10, {RP}")
    a(f"v_mul_lo_u32 v{T}, v{T}, s10")
    a(f"v_lshrrev_b32 v{T+1}, 5, v0")
    a(f"v_lshlrev_b32 v{T+1}, 4, v{T+1}")
    a(f"v_add_u32 v{T}, v{T}, v{T+1}")
    a(f"v_add_u32 v{T}, s{S_FL}, v{T}")
    a("v_lshrrev_b32 v2, 3, v0")
    a("v_and_b32 v3, 7, v0")
    a("v_lshlrev_b32 v4, 10, v2")
    a("v_lshlrev_b32 v5, 4, v3")
    a("v_add_u32 v4, v4, v5")
    a(f"s_lshl_b32 s10, s{S_FRT}, 16")
    a(f"s_lshl_b32 s11, s{S_WAVE}, 14")
    a("s_add_u32 s10, s10, s11")
    a(f"s_lshl_b32 s11, s{S_FCB}, 7")
    a("s_add_u32 s12, s10, s11")
    a("s_add_u32 s13, s12, 8192")
    a(f"buffer_load_dwordx4 v[8:11], v4, {srd(SRD_X)}, s12 offen")
    a(f"buffer_load_dwordx4 v[12:15], v4, {srd(SRD_X)}, s13 offen")
    for rt in range(2):
        for t in range(2):
            for q in range(4):
                r = F_ACC + 16 * (2 * rt + t) + 4 * q
                a(f"ds_write_b128 v{T}, {vr(r,4)} offset:{rt*32*RP + (t*32+8*q)*4}")
    a("s_waitcnt lgkmcnt(0)")
    a(f"v_mov_b32 v6, {LDS_CNT+12}")
    a("v_mov_b32 v7, 1")
    a("s_mov_b64 exec, 1")
    a("ds_add_u32 v6, v7")
    a("s_mov_b64 exec, -1")
    lds_wait_count(a, LDS_CNT + 12, 4, 6, 7, "fr_bar")
    a(f"s_movk_i32 s10, {RP}")
    a("v_mul_lo_u32 v6, v2, s10")
    a("v_lshlrev_b32 v7, 5, v3")
    a("v_add_u32 v6, v6, v7")
    a(f"s_mul_i32 s10, s{S_WAVE}, {16*RP}")
    a(f"s_add_u32 s10, s10, {BLK}")
    a("v_add_u32 v6, s10, v6")
    a(f"v_add_u32 v7, {2*F_RING}, v6")
    B0 = 128
    for it in range(2):
        for w in range(4):
            base = B0 + 32 * it + 8 * w
            av = 6 + (w >> 1)
            a(f"ds_read_b128 {vr(base,4)}, v{av} offset:{(w&1)*F_RING + it*8*RP}")
            a(f"ds_read_b128 {vr(base+4,4)}, v{av} offset:{(w&1)*F_RING + it*8*RP + 16}")
    a("s_waitcnt vmcnt(0) lgkmcnt(0)")
    for it in range(2):
        b = B0 + 32 * it; xr = 8 + 4 * it
        for e in range(8):
            a(f"v_add_f32 v{b+e}, v{b+e}, v{b+8+e}")
            a(f"v_add_f32 v{b+16+e}, v{b+16+e}, v{b+24+e}")
        for e in range(8): a(f"v_add_f32 v{b+e}, v{b+e}, v{b+16+e}")
        for d in range(4):
            a(f"v_lshlrev_b32 v{b+8}, 16, v{xr+d}")
            a(f"v_and_b32 v{b+9}, 0xffff0000, v{xr+d}")
            a(f"v_add_f32 v{b+2*d}, v{b+2*d}, v{b+8}")
            a(f"v_add_f32 v{b+2*d+1}, v{b+2*d+1}, v{b+9}")
        for d in range(4): a(f"v_cvt_pk_bf16_f32 v{b+16+d}, v{b+2*d}, v{b+2*d+1}")
        a(f"buffer_store_dwordx4 {vr(b+16,4)}, v4, {srd(SRD_OUT)}, s{12+it} offen")

def c_phaseB(a):
    lds_inc(a, LDS_CNT + 8, 12, 13)
    epi_pair_unit(a, ACCX, S_U_LATE, 6, FR0)
    stamp(a, 7, 12, 13)
    lds_wait_count(a, LDS_CNT + 8, 4, 12, 13, "cbar")
    f_setup(a)
    if os.environ.get("CPRIO"):
        a("s_waitcnt vmcnt(0)")
        lds_arrive_last(a, LDS_CNT + 16, 12, 13, "c_fl2")
        flag_set(a, 3, 12, 13)
        a("L_c_fl2_skip:")
        lds_wait_count(a, LDS_CNT + 52, 4, 12, 13, "c_prio")
        a.fq = []
        for n in range(FD):
            f_issue_w(a, n); a.fq.extend([('w', n)] * 2)
        a.f_w_issued = FD
    else:
        a.fq = [('s',)] * (4 + NST)
        for n in range(FD):
            f_issue_w(a, n); a.fq.extend([('w', n)] * 2)
        a.f_w_issued = FD
        a(f"s_waitcnt vmcnt({2*FD})")
        del a.fq[:4 + NST]
        lds_arrive_last(a, LDS_CNT + 16, 12, 13, "c_fl2")
        flag_set(a, 3, 12, 13)
        a("L_c_fl2_skip:")
    def voff_f0(t1):
        a(f"s_lshr_b32 s10, s{S_FRT}, 1")
        a(f"s_add_u32 s10, s10, {FL_2}")
        a("s_lshl_b32 s10, s10, 7")
        a(f"v_lshlrev_b32 v{t1}, 2, v0")
        a(f"v_add_u32 v{t1}, s10, v{t1}")
    wg_wait(a, S_WAVE, 0, voff_f0, 16, 2, LDS_CNT + 32, F_T, F_T + 1, "fw_f0")
    for n in range(FD):
        f_issue_a(a, n); a.fq.extend([('a', n)] * 2)
    a.f_a_issued = FD

def gen():
    a = Asm()
    prologue(a)
    stamp(a, 0, 4, 5)
    touch_t0(a, 48)
    if os.environ.get("CODEPF"):
        a(f"s_cmp_eq_u32 s{S_WAVE}, 7")
        a("s_cbranch_scc0 L_nocpf")
        a("s_getpc_b64 s[12:13]")
        a("s_and_b32 s12, s12, 0xffffff00")
        a(f"s_lshl_b32 s10, s{S_J}, 11")
        a("v_lshlrev_b32 v70, 7, v0")
        a("v_add_u32 v70, s10, v70")
        a(f"s_mov_b32 s11, L_exit-{KNAME}-1024")
        a("v_cmp_gt_u32 vcc, s11, v70")
        a("s_and_b64 vcc, vcc, 0xffff")
        a("s_and_saveexec_b64 s[14:15], vcc")
        a("s_cbranch_execz L_cpf_r")
        a("global_load_dword v72, v70, s[12:13]")
        a("L_cpf_r:")
        a("s_mov_b64 exec, -1")
        a("L_nocpf:")
    for k in range(16):
        if LST: a(f"s_mov_b32 s{16+k}, 0")
    lstamp(a, 0)
    a(f"s_cmp_ge_u32 s{S_WAVE}, 4")
    a("s_cbranch_scc1 L_hwave")
    c_phaseA(a)
    lstamp(a, 10)
    c_phaseB(a)
    final_gemm(a)
    stamp(a, 11, F_T, F_T + 1)
    lstamp(a, 14)
    final_reduce(a)
    a("s_waitcnt vmcnt(0)")
    lstamp(a, 15)
    ldump(a, 4, 5)
    a("s_waitcnt vmcnt(0)")
    stamp(a, 12, 4, 5)
    a("s_endpgm")
    a("L_hwave:")
    a.forget_waits()
    a(f"s_sub_u32 s{S_HW}, s{S_WAVE}, 4")
    h_phaseA(a)
    stamp(a, 1, H_T, H_T + 1)
    attention(a)
    a("s_waitcnt vmcnt(0)")
    stamp(a, 5, 6, 7)
    lstamp(a, 13)
    ldump(a, 6, 7)
    a("s_waitcnt vmcnt(0)")
    a("L_exit:")
    a("s_endpgm")
    return a

HEADER = open("parallel_sum__sliding_block__glu_gated_glu__prompt.s.ref").read().split("; Override")[0]
def emit(path):
    a = gen()
    if a.errors:
        print("\n".join(a.errors[:30])); print(len(a.errors), "errors")
    out = HEADER + f"; @launch grid=(256,1,1) block=(512,1,1) lds={LDS_TOTAL}\n"
    out += '.amdgcn_target "amdgcn-amd-amdhsa--gfx950"\n.text\n'
    out += f".globl {KNAME}\n.p2align 8\n.type {KNAME},@function\n{KNAME}:\n" + a.text()
    out += (f'.section .rodata,"a"\n.p2align 6\n.amdhsa_kernel {KNAME}\n  .amdhsa_next_free_vgpr 256\n  .amdhsa_next_free_sgpr 102\n'
            f'  .amdhsa_accum_offset 256\n  .amdhsa_group_segment_fixed_size 0\n  .amdhsa_kernarg_size 80\n  .amdhsa_user_sgpr_count 2\n'
            f'  .amdhsa_user_sgpr_kernarg_segment_ptr 1\n  .amdhsa_system_sgpr_workgroup_id_x 1\n.end_amdhsa_kernel\n')
    open(path, "w").write(out)
    print("instrs", a.count, "nops", a.nops_inserted)
if __name__ == "__main__":
    emit(sys.argv[1] if len(sys.argv) > 1 else "f.s")
```
